```python
import torch

def _softmax(x, axis=-1):
    return torch.softmax(x, dim=axis)
def _gelu(x):
    return torch.nn.functional.gelu(x, approximate="tanh")
def _silu(x):
    return torch.nn.functional.silu(x)
def _sigmoid(x):
    return torch.sigmoid(x)
def _layernorm(x, axis=-1, eps=1e-5):
    m = x.mean(dim=axis, keepdim=True)
    v = x.var(dim=axis, keepdim=True, unbiased=False)
    return (x - m) / torch.sqrt(v + eps)
def _scatter_add(tgt, idx, src, axis=0):
    return tgt.clone().index_add_(axis, idx, src)
def _segment_sum(src, seg, n):
    out = torch.zeros((n,) + src.shape[1:], dtype=src.dtype)
    return out.index_add_(0, seg, src)
def _pad(x, pw):
    flat = tuple(v for pair in reversed(pw) for v in pair)
    return torch.nn.functional.pad(x, flat)

kernel_name = 'concat_heads__mha_block__compressed_kv_cla__prompt'

def setup_inputs():

    _w = (lambda a: (lambda t: t.to(torch.bfloat16) if t.is_floating_point() else t)(torch.as_tensor(a)))
    def _A_setup():
        B, S, D, H = 1, 2048, 512, 32
        return {
            "x": _w((lambda *s: torch.randn(*s, dtype=torch.bfloat16) * 0.4)(B, S, D)),
            "wqkv": _w((lambda *s: torch.randn(*s, dtype=torch.bfloat16) * 0.4)(D, 3 * D)),
            "wo": _w((lambda *s: torch.randn(*s, dtype=torch.bfloat16) * 0.05)(D, D)),
        }
    _A_in = _A_setup()

    def _B_setup():
        B, H, Sq, Sk, D, M = 1, 32, 2048, 2048, 128, 512
        Dc = 4 * D
        return {
            "x": _w((lambda *s: torch.randn(*s, dtype=torch.bfloat16) * 0.2)(B, Sq, M)),
            "c_kv": _w((lambda *s: torch.randn(*s, dtype=torch.bfloat16) * 1.6)(B, Sk, Dc)),
            "w_q": _w((lambda *s: torch.randn(*s, dtype=torch.bfloat16) * 3.2)(M, H, D) * (M ** -0.5)),
            "w_uk": _w((lambda *s: torch.randn(*s, dtype=torch.bfloat16) * 3.2)(Dc, H, D) * (Dc ** -0.5)),
            "w_uv": _w((lambda *s: torch.randn(*s, dtype=torch.bfloat16) * 1.6)(Dc, H, D) * (Dc ** -0.5)),
            "w_o": _w((lambda *s: torch.randn(*s, dtype=torch.bfloat16) * 1.6)(H, D, M) * ((H * D) ** -0.5)),
        }
    _B_in = _B_setup()

    return {
        "A_x": _A_in["x"],
        "A_wqkv": _A_in["wqkv"],
        "A_wo": _A_in["wo"],
        "B_x": _B_in["x"],
        "B_c_kv": _B_in["c_kv"],
        "B_w_q": _B_in["w_q"],
        "B_w_uk": _B_in["w_uk"],
        "B_w_uv": _B_in["w_uv"],
        "B_w_o": _B_in["w_o"],
    }

def reference(A_x, A_wqkv, A_wo, B_x, B_c_kv, B_w_q, B_w_uk, B_w_uv, B_w_o):
    def _A_ref(x, wqkv, wo):
        B, S, D = x.shape
        H = 32
        Dh = D // H
        qkv = (lambda x, *d: x.permute(*d))((x @ wqkv).reshape(B, S, 3, H, Dh), 2, 0, 3, 1, 4)
        q, k, v = qkv[0], qkv[1], qkv[2]
        scores = torch.einsum("bhqd,bhkd->bhqk", q, k) * (Dh ** -0.5)
        p = _softmax(scores, axis=-1)
        o = torch.einsum("bhqk,bhkd->bhqd", p, v)
        return (lambda x, *d: x.permute(*d))(o, 0, 2, 1, 3).reshape(B, S, D) @ wo

    def _B_ref(x, c_kv, w_q, w_uk, w_uv, w_o):
        B, Sq, M = x.shape[0], x.shape[1], x.shape[2]
        Sk = c_kv.shape[1]
        H, D = w_q.shape[1], w_q.shape[2]
        q = torch.einsum("bqm,mhd->bhqd", x, w_q)
        k = torch.einsum("bkc,chd->bhkd", c_kv, w_uk)
        v = torch.einsum("bkc,chd->bhkd", c_kv, w_uv)
        scores = torch.einsum("bhqd,bhkd->bhqk", q, k) * (D ** -0.5)
        off = Sk - Sq
        qi = torch.arange(Sq)[:, None]
        kj = torch.arange(Sk)[None, :]
        cmask = kj <= (qi + off)
        scores = torch.where(cmask[None, None], scores, -1e9)
        p = _softmax(scores, axis=-1)
        ctx = torch.einsum("bhqk,bhkd->bhqd", p, v)
        return torch.einsum("bhqd,hdm->bqm", ctx, w_o)

    a = _A_ref(A_x, A_wqkv, A_wo)
    b = _B_ref(B_x, B_c_kv, B_w_q, B_w_uk, B_w_uv, B_w_o)
    return torch.concatenate([a, b], axis=-1)
```

```python
from asmlib import *
from layout import *
import struct
def f32hex(x): return "0x%08x" % struct.unpack('<I', struct.pack('<f', x))[0]
def mf(d, a_, b_, c): return I(f"v_mfma_f32_32x32x16_bf16 {d}, {a_}, {b_}, {c}")

STAGE = 12288
RING = 4
LDS_FLAG = RING * STAGE
LDS_BYTES = RING * STAGE + 256
V_LANE16, V_CUR, V_NXT, V_T0, V_T1, V_T2, V_T3, V_DMA, V_NEG0, V_NEG1, V_ZERO = range(1, 12)
V_Q = 12
V_K = 20
V_V = 28
V_P = 44
V_O = 64
V_CI = 96
V_S = 128
S_KV = 4; S_QS = 8; S_CT = 12
S_H, S_G, S_W, S_NS, S_DOFF, S_DLDS, S_NXB, S_TMP, S_TMP2, S_THR = range(16, 26)
def Sr(par, qb): return V_S + 32 * par + 16 * qb

def dma(d): return I(f"buffer_load_dwordx4 v{V_DMA}, {s(S_KV,4)}, s{S_DOFF} offen offset:{d*1024} lds")

DBG = {}
def body():
    out = []
    for it in range(4):
        par = it % 2; nx = 1 - par
        kb_use = V_K + 4 * ((it + 1) % 2)
        kb_ld = V_K + 4 * (it % 2)
        vb_use = V_V + 8 * (it % 2)
        vb_ld = V_V + 8 * ((it + 1) % 2)
        kt = it + 2; kbase = V_CUR if kt < 4 else V_NXT; koff = (kt % 4) * 3072
        vt = it + 1; vbase = V_CUR if vt < 4 else V_NXT; voff = (vt % 4) * 3072 + 1024
        def E(e): qb, r = divmod(e, 16); return I(f"v_exp_f32 v{Sr(par,qb)+r}, v{Sr(par,qb)+r}")
        def C(qb, k, pp=par): return I(f"v_cvt_pk_bf16_f32 v{V_P+8*qb+k}, v{Sr(pp,qb)+2*k}, v{Sr(pp,qb)+2*k+1}")
        after = {e: [] for e in range(32)}
        after[0] += [C(1, 6, nx)]
        after[1] += [C(1, 7, nx)]
        after[2] += [Wait(regs_of(kb_use, 4)), mf(v(Sr(nx, 0), 16), v(kb_use, 4), v(V_Q, 4), v(V_CI, 16))]
        after[5] += [mf(v(V_O + 16, 16), v(vb_ld + 4, 4), v(V_P + 12, 4), v(V_O + 16, 16))]
        after[7] += [mf(v(Sr(nx, 1), 16), v(kb_use, 4), v(V_Q + 4, 4), v(V_CI + 16, 16)),
                     I(f"ds_read_b128 {v(kb_ld,4)}, v{kbase} offset:{koff}")]
        for k in range(8): after[4 + 2 * k].append(C(0, k))
        for k in range(6): after[20 + 2 * k].append(C(1, k))
        after[9] += [I(f"ds_read_b128 {v(vb_ld,4)}, v{vbase} offset:{voff}")]
        after[11] += [I(f"ds_read_b128 {v(vb_ld+4,4)}, v{vbase} offset:{voff + 1024}")]
        after[13] += [Wait(regs_of(vb_use, 8)), mf(v(V_O, 16), v(vb_use, 4), v(V_P, 4), v(V_O, 16))]
        after[21] += [mf(v(V_O, 16), v(vb_use + 4, 4), v(V_P + 4, 4), v(V_O, 16))]
        after[29] += [mf(v(V_O + 16, 16), v(vb_use, 4), v(V_P + 8, 4), v(V_O + 16, 16))]
        if it == 2:
            after[5] += [I("s_waitcnt vmcnt(3)"), I("s_barrier"), I(f"s_mov_b32 m0, s{S_DLDS}")]
            after[13].append(dma(0)); after[21].append(dma(1)); after[29].append(dma(2))
        if it == 3:
            after[13] += [I(f"s_add_u32 s{S_DOFF}, s{S_DOFF}, {STAGE}"), I(f"s_add_u32 s{S_DLDS}, s{S_DLDS}, {STAGE}")]
            after[21] += [I(f"s_cmp_eq_u32 s{S_DLDS}, s{S_TMP2}"), I(f"s_cselect_b32 s{S_DLDS}, s{S_TMP}, s{S_DLDS}")]
            after[29] += [I(f"s_add_u32 s{S_NXB}, s{S_NXB}, {STAGE}"), I(f"s_cmp_eq_u32 s{S_NXB}, {RING*STAGE}"), I(f"s_cselect_b32 s{S_NXB}, 0, s{S_NXB}")]
            after[30] += [I(f"v_mov_b32 v{V_CUR}, v{V_NXT}")]
            after[31] += [I(f"v_add_u32 v{V_NXT}, s{S_NXB}, v{V_LANE16}")]
        for e in range(32):
            out.append(E(e)); out += after[e]
    if DBG.get('nocvt'): out = [x for x in out if not x.op.startswith('v_cvt')]
    if DBG.get('nomfma'): out = [x for x in out if x.kind != 'mfma']
    if DBG.get('nods'): out = [x for x in out if x.kind not in ('dsread',) and not isinstance(x, Wait)]
    if DBG.get('nobar'): out = [x for x in out if x.kind not in ('barrier', 'dma') and 'vmcnt' not in x.text]
    if DBG.get('oop'):
        for x in out:
            if x.op == 'v_exp_f32':
                r = int(x.ops[0][1:]); x.text = f"v_exp_f32 v{r}, v{V_CI + (r % 32)}"
    resolve_waits(out)
    return out

def gen(name="aattn_kernel", timing=False, id_base=0):
    p = Prog()
    if id_base: p(f"s_sub_u32 s2, s2, {id_base}")
    p("s_cmp_ge_u32 s2, 256")
    p("s_cbranch_scc1 A_END")
    p(f"s_load_dwordx2 s[34:35], s[0:1], {KA_WS}")
    if timing:
        p(f"s_load_dwordx2 s[36:37], s[0:1], {KA_OUT}")
        p("s_memtime s[40:41]")
        p("s_memrealtime s[50:51]")
    p(f"v_and_b32 v{V_T0}, 63, v0")
    p(f"v_lshlrev_b32 v{V_LANE16}, 4, v{V_T0}")
    p(f"v_and_b32 v{V_T1}, 0x3ff, v0")
    p(f"v_lshrrev_b32 v{V_T1}, 6, v{V_T1}")
    p(f"s_and_b32 s{S_TMP}, s2, 7")
    p(f"s_lshl_b32 s{S_TMP}, s{S_TMP}, 2")
    p(f"v_readfirstlane_b32 s{S_W}, v{V_T1}", tag='wave')
    p(f"s_bfe_u32 s{S_H}, s2, 0x20003")
    p(f"s_add_u32 s{S_H}, s{S_H}, s{S_TMP}")
    p(f"s_lshr_b32 s{S_G}, s2, 5")
    p(f"v_mov_b32 v{V_ZERO}, 0")
    p(f"s_mov_b32 s{S_THR}, {f32hex(2.0**40)}")
    p(f"s_mul_i32 s{S_TMP}, s{S_W}, 3072")
    p(f"v_add_u32 v{V_DMA}, s{S_TMP}, v{V_LANE16}")
    p("s_waitcnt lgkmcnt(0)")
    p(f"s_mul_i32 s{S_TMP2}, s{S_H}, {64*3072}")
    p(f"s_add_u32 s{S_TMP2}, s{S_TMP2}, {WS_KVA}")
    p(f"s_add_u32 s{S_KV}, s34, s{S_TMP2}")
    p(f"s_addc_u32 s{S_KV+1}, s35, 0")
    p(f"s_mov_b32 s{S_KV+2}, {64*3072}")
    p(f"s_mov_b32 s{S_KV+3}, 0x20000")
    p(f"s_add_u32 s{S_QS}, s34, {WS_QA}")
    p(f"s_addc_u32 s{S_QS+1}, s35, 0")
    p(f"s_mov_b32 s{S_QS+2}, {2*MB}")
    p(f"s_mov_b32 s{S_QS+3}, 0x20000")
    p(f"s_add_u32 s{S_CT}, s34, {WS_CTXA}")
    p(f"s_addc_u32 s{S_CT+1}, s35, 0")
    p(f"s_mov_b32 s{S_CT+2}, {2*MB}")
    p(f"s_mov_b32 s{S_CT+3}, 0x20000")
    p(f"s_mul_i32 s{S_DLDS}, s{S_W}, 3072")
    p(f"s_mov_b32 s{S_DOFF}, 0")
    def stage():
        p(f"s_mov_b32 m0, s{S_DLDS}")
        p("s_nop 0")
        for d in range(3): p.add(dma(d))
        p(f"s_add_u32 s{S_DOFF}, s{S_DOFF}, {STAGE}")
        p(f"s_add_u32 s{S_DLDS}, s{S_DLDS}, {STAGE}")
    stage()
    p(f"s_lshl_b32 s{S_TMP}, s{S_H}, 6")
    p(f"s_lshl_b32 s{S_TMP2}, s{S_G}, 3")
    p(f"s_add_u32 s{S_TMP}, s{S_TMP}, s{S_TMP2}")
    p(f"s_lshl_b32 s{S_TMP2}, s{S_W}, 1")
    p(f"s_add_u32 s{S_TMP}, s{S_TMP}, s{S_TMP2}")
    p(f"s_lshl_b32 s{S_TMP}, s{S_TMP}, 10")
    p(f"buffer_load_dwordx4 {v(V_Q,4)}, v{V_LANE16}, {s(S_QS,4)}, s{S_TMP} offen")
    p(f"buffer_load_dwordx4 {v(V_Q+4,4)}, v{V_LANE16}, {s(S_QS,4)}, s{S_TMP} offen offset:1024")
    stage(); stage()
    p(f"s_mul_i32 s{S_TMP}, s{S_W}, 3072")
    p(f"s_add_u32 s{S_TMP2}, s{S_TMP}, {RING*STAGE}")
    p(f"v_mov_b32 v{V_CUR}, v{V_LANE16}")
    p(f"v_add_u32 v{V_NXT}, {STAGE}, v{V_LANE16}")
    p(f"s_mov_b32 s{S_NXB}, {STAGE}")
    p(f"v_mov_b32 v{V_T1}, {LDS_FLAG}")
    p(f"ds_write_b32 v{V_T1}, v{V_ZERO}")
    for r in range(32): p(f"v_mov_b32 v{V_O+r}, 0")
    p("s_waitcnt vmcnt(6) lgkmcnt(0)")
    p("s_barrier")
    if timing:
        p("s_memtime s[42:43]")
        p("s_waitcnt lgkmcnt(0)")
    p(f"ds_read_b128 {v(V_K,4)}, v{V_CUR} offset:0")
    p(f"ds_read_b128 {v(V_K+4,4)}, v{V_CUR} offset:3072")
    p(f"ds_read_b128 {v(V_V,4)}, v{V_CUR} offset:1024")
    p(f"ds_read_b128 {v(V_V+4,4)}, v{V_CUR} offset:2048")
    p("s_waitcnt lgkmcnt(2)")
    for par in range(2):
        for qb in range(2): p.add(mf(v(Sr(par, qb), 16), v(V_K + 4 * par, 4), v(V_Q + 4 * qb, 4), "0"))
    p("s_nop 7"); p("s_nop 7")
    for qb in range(2):
        t = V_T0 + qb; first = True
        regs = [Sr(0, qb) + r for r in range(16)] + [Sr(1, qb) + r for r in range(16)]
        p(f"v_max3_f32 v{t}, v{regs[0]}, v{regs[1]}, v{regs[2]}")
        for k in range(3, 31, 2): p(f"v_max3_f32 v{t}, v{t}, v{regs[k]}, v{regs[k+1]}")
        p(f"v_max_f32 v{t}, v{t}, v{regs[31]}")
    p(f"v_mov_b32 v{V_T2}, v{V_T0}")
    p(f"v_mov_b32 v{V_T3}, v{V_T1}")
    p("s_nop 1")
    p(f"v_permlane32_swap_b32 v{V_T0}, v{V_T2}")
    p(f"v_permlane32_swap_b32 v{V_T1}, v{V_T3}")
    p("s_nop 1")
    p(f"v_max_f32 v{V_T0}, v{V_T0}, v{V_T2}")
    p(f"v_max_f32 v{V_T1}, v{V_T1}, v{V_T3}")
    p(f"v_sub_f32 v{V_NEG0}, {f32hex(-BIAS)}, v{V_T0}")
    p(f"v_sub_f32 v{V_NEG1}, {f32hex(-BIAS)}, v{V_T1}")
    p("A_START:")
    for qb in range(2):
        for r in range(16):
            p(f"v_add_f32 v{Sr(0,qb)+r}, v{V_NEG0+qb}, v{Sr(0,qb)+r}")
            p(f"v_mov_b32 v{V_CI+16*qb+r}, v{V_NEG0+qb}")
    for r in range(12, 16): p(f"v_mov_b32 v{Sr(1,1)+r}, 0")
    for r in range(4, 6): p(f"v_mov_b32 v{V_P+8+r}, 0")
    for r in range(4): p(f"v_mov_b32 v{V_V+8+4+r}, 0")
    p(f"s_mov_b32 s{S_NS}, 15")
    p("s_waitcnt lgkmcnt(0)")
    p("A_LOOP:")
    p.add(body())
    p(f"s_sub_u32 s{S_NS}, s{S_NS}, 1")
    p("s_cbranch_scc0 A_LOOP")
    p(f"v_cvt_pk_bf16_f32 v{V_P+8+6}, v{Sr(1,1)+12}, v{Sr(1,1)+13}")
    p(f"v_cvt_pk_bf16_f32 v{V_P+8+7}, v{Sr(1,1)+14}, v{Sr(1,1)+15}")
    p("s_nop 1")
    p.add(mf(v(V_O + 16, 16), v(V_V + 8 + 4, 4), v(V_P + 12, 4), v(V_O + 16, 16)))
    if timing: p("s_memtime s[44:45]")
    p("s_nop 7"); p("s_nop 7")
    p(f"v_mov_b32 v{V_T2}, s{S_THR}")
    p("s_nop 1")
    p(f"v_cmp_nlt_f32 vcc, v{V_O+8}, v{V_T2}")
    p(f"v_cmp_nlt_f32 s[38:39], v{V_O+24}, v{V_T2}")
    p(f"v_rcp_f32 v{V_T0}, v{V_O+8}")
    p(f"v_rcp_f32 v{V_T1}, v{V_O+24}")
    p("s_nop 1")
    p("s_or_b64 vcc, vcc, s[38:39]")
    p("s_nop 4")
    p("s_cbranch_vccnz A_SETFLAG", tag='flag')
    p("A_FLAGBACK:")
    p(f"v_and_b32 v{V_T2}, 63, v0")
    p(f"v_bfe_u32 v{V_T3}, v{V_T2}, 4, 1")
    p(f"v_lshlrev_b32 v{V_T3}, 14, v{V_T3}")
    p(f"v_lshrrev_b32 v{V_CUR}, 5, v{V_T2}")
    p(f"v_lshl_add_u32 v{V_T3}, v{V_CUR}, 8, v{V_T3}")
    p(f"v_and_b32 v{V_T2}, 15, v{V_T2}")
    p(f"v_lshl_add_u32 v{V_T3}, v{V_T2}, 4, v{V_T3}")
    p(f"s_lshl_b32 s{S_TMP}, s{S_G}, 4")
    p(f"s_lshl_b32 s{S_TMP2}, s{S_W}, 2")
    p(f"s_add_u32 s{S_TMP}, s{S_TMP}, s{S_TMP2}")
    p(f"s_lshl_b32 s{S_TMP}, s{S_TMP}, 14")
    p(f"s_lshr_b32 s{S_TMP2}, s{S_H}, 1")
    p(f"s_lshl_b32 s{S_TMP2}, s{S_TMP2}, 10")
    p(f"s_add_u32 s{S_TMP}, s{S_TMP}, s{S_TMP2}")
    p(f"s_and_b32 s{S_TMP2}, s{S_H}, 1")
    p(f"s_lshl_b32 s{S_TMP2}, s{S_TMP2}, 9")
    p(f"s_add_u32 s{S_TMP}, s{S_TMP}, s{S_TMP2}")
    for qb in range(2):
        o = V_O + 16 * qb
        for r in range(8): p(f"v_mul_f32 v{o+r}, v{V_T0+qb}, v{o+r}")
        for k in range(4): p(f"v_cvt_pk_bf16_f32 v{o+k}, v{o+2*k}, v{o+2*k+1}")
        if qb == 1: p(f"s_add_u32 s{S_TMP}, s{S_TMP}, {2*16384}")
        p(f"buffer_store_dwordx4 {v(o,4)}, v{V_T3}, {s(S_CT,4)}, s{S_TMP} offen")
    p("s_waitcnt vmcnt(0) lgkmcnt(0)")
    if timing:
        p("s_memtime s[46:47]")
        p("s_memrealtime s[52:53]")
        p("s_waitcnt lgkmcnt(0)")
        p("s_sub_u32 s42, s42, s40"); p("s_sub_u32 s44, s44, s40"); p("s_sub_u32 s46, s46, s40"); p("s_sub_u32 s48, s52, s50")
        p("s_mov_b32 s38, 0x100000"); p("s_mov_b32 s39, 0x20000")
        p("v_mov_b32 v64, s42"); p("v_mov_b32 v65, s44"); p("v_mov_b32 v66, s46"); p("v_mov_b32 v67, s48")
        p(f"s_lshl_b32 s{S_TMP}, s2, 3"); p(f"s_add_u32 s{S_TMP}, s{S_TMP}, s{S_W}"); p(f"s_lshl_b32 s{S_TMP}, s{S_TMP}, 4")
        p("v_mov_b32 v68, 0"); p("s_nop 1")
        p(f"buffer_store_dwordx4 v[64:67], v68, s[36:39], s{S_TMP} offen")
        p("s_waitcnt vmcnt(0)")
    p("s_endpgm")
    p("A_SETFLAG:")
    p(f"v_mov_b32 v{V_T2}, {LDS_FLAG}")
    p(f"v_mov_b32 v{V_T3}, 1")
    p(f"ds_write_b32 v{V_T2}, v{V_T3}")
    p("s_branch A_FLAGBACK")
    p("A_END:")
    p("s_endpgm")
    return p

if __name__ == "__main__":
    p = gen()
    for w in range(4):
        tr = trace(p, {'s2': 37}, hints={'wave': lambda st, w=w: st.__setitem__(f's{S_W}', w)})
        pr = check(tr, f"w{w}")
        print(w, len(tr), "mfma", sum(1 for i in tr if i.kind == 'mfma'), "exp", sum(1 for i in tr if i.op == 'v_exp_f32'), "problems", len(pr))
        for x in pr[:6]: print("   ", x[:230])
    print(max_regs(p), len(p.ins))
```

```python
import re

def _expand(tok):
    tok = tok.strip()
    m = re.fullmatch(r'(-|\|)?([vas])\[(\d+):(\d+)\]\|?', tok)
    if m:
        return [f"{m.group(2)}{i}" for i in range(int(m.group(3)), int(m.group(4)) + 1)]
    m = re.fullmatch(r'(-)?(abs\()?\|?([vas])(\d+)\|?\)?', tok)
    if m:
        return [f"{m.group(3)}{m.group(4)}"]
    if tok in ('vcc',): return ['vcc']
    if tok in ('vcc_lo', 'vcc_hi'): return ['vcc']
    if tok in ('exec', 'exec_lo', 'exec_hi'): return ['exec']
    if tok == 'm0': return ['m0']
    if tok == 'scc': return ['scc']
    return []

NO_DST = ('s_cmp', 's_cbranch', 's_branch', 's_waitcnt', 's_barrier', 's_nop', 's_setprio', 's_endpgm',
          'buffer_store', 'global_store', 'ds_write', 's_sleep', 's_sethalt', 'buffer_wbl2', 'buffer_inv', 's_bitcmp')
SCC_WRITERS = ('s_add_', 's_sub_', 's_addc', 's_subb', 's_and_', 's_or_', 's_xor_', 's_lshl', 's_lshr', 's_ashr', 's_cmp',
               's_min', 's_max', 's_andn2', 's_orn2', 's_not', 's_bfe', 's_addk', 's_bitcmp', 's_abs', 's_mul_hi_no')
TRANS = ('v_exp_f32', 'v_log_f32', 'v_rcp_f32', 'v_rsq_f32', 'v_sqrt_f32', 'v_sin_f32', 'v_cos_f32')

class I:
    __slots__ = ('text', 'op', 'reads', 'writes', 'kind', 'tag', 'ops', 'srcc', 'srca', 'srcb', 'label', 'comment')
    def __init__(self, text, tag=None):
        self.tag = tag
        self.comment = None
        t = text.split(';')[0].strip()
        self.text = t
        self.label = None
        self.reads = []; self.writes = []; self.ops = []
        self.srcc = []; self.srca = []; self.srcb = []
        if t.endswith(':'):
            self.label = t[:-1]; self.op = 'label'; self.kind = 'label'; return
        parts = t.split(None, 1)
        self.op = op = parts[0]
        rest = parts[1] if len(parts) > 1 else ''
        ops = [o.strip() for o in rest.split(',')] if rest else []
        mods = ''
        if ops:
            last = ops[-1].split(None, 1)
            ops[-1] = last[0]
            mods = last[1] if len(last) > 1 else ''
        self.ops = ops
        regs = [_expand(o) for o in ops]
        k = None
        if op.startswith('v_mfma'):
            k = 'mfma'
            self.writes = regs[0]; self.srca = regs[1]; self.srcb = regs[2]; self.srcc = regs[3]
            self.reads = regs[1] + regs[2] + regs[3]
        elif op.startswith('buffer_load') or op.startswith('global_load'):
            if re.search(r'\blds\b', mods) or op.startswith('global_load_lds'):
                k = 'dma'; self.reads = sum(regs, []) + ['m0']
            else:
                k = 'vload'; self.writes = regs[0]; self.reads = sum(regs[1:], [])
        elif op.startswith('buffer_store') or op.startswith('global_store'):
            k = 'vstore'; self.reads = sum(regs, [])
        elif op.startswith('buffer_atomic') or op.startswith('global_atomic'):
            k = 'vstore'; self.reads = sum(regs, [])
            if 'sc0' in mods: self.writes = regs[0][:1]; k = 'vload'
        elif op.startswith('buffer_wbl2') or op.startswith('buffer_inv'):
            k = 'vstore'
        elif op.startswith('ds_read') or op.startswith('ds_bpermute') or op.startswith('ds_swizzle'):
            k = 'dsread'; self.writes = regs[0]; self.reads = sum(regs[1:], [])
        elif op.startswith('ds_write') or op.startswith('ds_or') or op.startswith('ds_add') or op.startswith('ds_max'):
            k = 'dswrite'; self.reads = sum(regs, [])
        elif op.startswith('s_load') or op.startswith('s_memtime') or op.startswith('s_memrealtime'):
            k = 'smem'; self.writes = regs[0]; self.reads = sum(regs[1:], [])
        elif op == 's_waitcnt': k = 'wait'
        elif op == 's_barrier': k = 'barrier'
        elif op == 's_nop': k = 'nop'
        elif op in ('s_sleep', 's_setprio'): k = 'salu'
        elif op in ('s_branch',) or op.startswith('s_cbranch'):
            k = 'branch'
            if 'scc' in op: self.reads = ['scc']
            if 'vcc' in op: self.reads = ['vcc']
            if 'exec' in op: self.reads = ['exec']
        elif op == 's_endpgm': k = 'end'
        elif op.startswith('s_'):
            k = 'salu'
            if op.startswith(NO_DST): self.reads = sum(regs, [])
            else:
                self.writes = list(regs[0]) if regs else []; self.reads = sum(regs[1:], [])
            if op.startswith(SCC_WRITERS): self.writes = self.writes + ['scc']
            if op.startswith('s_cselect') or op.startswith('s_addc') or op.startswith('s_subb') or op.startswith('s_cmov'):
                self.reads = self.reads + ['scc']
            if op.startswith('s_addk') or op.startswith('s_mulk') or op.startswith('s_cmov'): self.reads = self.reads + regs[0]
            if 'saveexec' in op: self.reads = self.reads + ['exec']; self.writes = self.writes + ['exec']
        elif op.startswith('v_'):
            k = 'trans' if op.startswith(TRANS) else 'valu'
            self.writes = list(regs[0]); self.reads = sum(regs[1:], [])
            if op.startswith('v_permlane32_swap') or op.startswith('v_permlane16_swap') or op.startswith('v_swap'):
                self.writes = regs[0] + regs[1]; self.reads = regs[0] + regs[1]
            if op.startswith('v_fmac') or op.startswith('v_pk_fmac') or op.startswith('v_dot2c') or op.startswith('v_writelane'):
                self.reads = self.reads + regs[0]
            if op.startswith('v_add_co') or op.startswith('v_sub_co') or op.startswith('v_addc_co'):
                self.writes = regs[0] + regs[1]; self.reads = sum(regs[2:], [])
            if op.startswith('v_cmpx'): self.writes = self.writes + ['exec']
            if op.startswith('v_cndmask') and len(ops) == 3: self.reads = self.reads + ['vcc']
            self.reads = self.reads + ['exec']
        else:
            raise ValueError("unknown op " + t)
        self.kind = k
    def __repr__(self): return self.text

class Prog:
    def __init__(self):
        self.ins = []
    def __call__(self, text, tag=None):
        out = []
        for line in text.strip().split('\n'):
            line = line.strip()
            if not line or line.startswith(';'): continue
            i = I(line, tag); self.ins.append(i); out.append(i)
        return out[-1] if out else None
    def add(self, x):
        if isinstance(x, I): self.ins.append(x)
        elif isinstance(x, str): self(x)
        else:
            for y in x: self.add(y)
    def text(self):
        o = []
        for i in self.ins:
            o.append(i.text if i.kind == 'label' else '    ' + i.text)
        return '\n'.join(o) + '\n'

def v(b, n=1): return f"v{b}" if n == 1 else f"v[{b}:{b+n-1}]"
def a(b, n=1): return f"a{b}" if n == 1 else f"a[{b}:{b+n-1}]"
def s(b, n=1): return f"s{b}" if n == 1 else f"s[{b}:{b+n-1}]"

def parse_wait(text):
    vm = re.search(r'vmcnt\((\d+)\)', text); lg = re.search(r'lgkmcnt\((\d+)\)', text)
    return (int(vm.group(1)) if vm else None, int(lg.group(1)) if lg else None)

def _imm(tok):
    tok = tok.strip()
    try:
        if tok.startswith('0x') or tok.startswith('-0x'): return int(tok, 16)
        return int(tok)
    except ValueError:
        return None

M32 = 0xffffffff
class TraceError(Exception): pass

def trace(prog, init, hints=None, branch_hints=None, max_steps=2000000):
    ins = prog.ins
    labels = {i.label: n for n, i in enumerate(ins) if i.kind == 'label'}
    st = dict(init)
    out = []
    pc = 0; steps = 0
    def val(tok):
        x = _imm(tok)
        if x is not None: return x & M32
        if tok in st: return st[tok]
        return None
    while pc < len(ins):
        i = ins[pc]; steps += 1
        if steps > max_steps: raise TraceError("trace too long")
        if i.kind == 'label': pc += 1; continue
        out.append(i)
        if i.kind == 'end': break
        if i.kind == 'branch':
            tgt = labels[i.ops[0]]
            if i.op == 's_branch': pc = tgt; continue
            if 'scc' in i.op:
                c = st.get('scc')
                if c is None: raise TraceError("unknown scc at " + i.text + f" (pc {pc})")
                take = (c == 1) if i.op.endswith('scc1') else (c == 0)
            else:
                key = i.tag if i.tag in (branch_hints or {}) else i.ops[0]
                take = (branch_hints or {}).get(key, False)
                if callable(take): take = take(st)
            pc = tgt if take else pc + 1
            continue
        if i.kind == 'salu' or (i.kind == 'smem'):
            op = i.op; o = i.ops
            def setd(x):
                st[o[0]] = None if x is None else x & M32
            if i.kind == 'smem':
                for r in i.writes: st[r] = None
            elif op == 's_mov_b32': setd(val(o[1]))
            elif op == 's_movk_i32': setd(val(o[1]))
            elif op in ('s_add_u32', 's_add_i32'):
                x, y = val(o[1]), val(o[2])
                if x is None or y is None: setd(None); st['scc'] = None
                else: st['scc'] = int(x + y > M32); setd(x + y)
            elif op in ('s_sub_u32', 's_sub_i32'):
                x, y = val(o[1]), val(o[2])
                if x is None or y is None: setd(None); st['scc'] = None
                else: st['scc'] = int(y > x); setd(x - y)
            elif op == 's_mul_i32':
                x, y = val(o[1]), val(o[2]); setd(None if x is None or y is None else x * y)
            elif op in ('s_lshl_b32', 's_lshr_b32', 's_and_b32', 's_or_b32', 's_xor_b32', 's_min_u32', 's_max_u32', 's_andn2_b32'):
                x, y = val(o[1]), val(o[2])
                if x is None or y is None: setd(None); st['scc'] = None
                else:
                    r = {'s_lshl_b32': lambda: x << (y & 31), 's_lshr_b32': lambda: x >> (y & 31), 's_and_b32': lambda: x & y,
                         's_or_b32': lambda: x | y, 's_xor_b32': lambda: x ^ y, 's_min_u32': lambda: min(x, y),
                         's_max_u32': lambda: max(x, y), 's_andn2_b32': lambda: x & ~y}[op]() & M32
                    setd(r)
                    st['scc'] = int(x < y) if op == 's_min_u32' else int(x > y) if op == 's_max_u32' else int(r != 0)
            elif op == 's_bfe_u32':
                x, y = val(o[1]), val(o[2])
                if x is None or y is None: setd(None); st['scc'] = None
                else:
                    r = (x >> (y & 31)) & ((1 << ((y >> 16) & 0x7f)) - 1); setd(r); st['scc'] = int(r != 0)
            elif op.startswith('s_cmp_'):
                x, y = val(o[0]), val(o[1])
                if x is None or y is None: st['scc'] = None
                else:
                    c = op.split('_')[2]; sg = op.endswith('i32')
                    if sg:
                        x = x - (1 << 32) if x >> 31 else x; y = y - (1 << 32) if y >> 31 else y
                    st['scc'] = int({'eq': x == y, 'lg': x != y, 'lt': x < y, 'le': x <= y, 'gt': x > y, 'ge': x >= y}[c])
            elif op == 's_cselect_b32':
                c = st.get('scc'); setd(None if c is None else val(o[1]) if c else val(o[2]))
            elif op in ('s_mov_b64',):
                for r in i.writes: st[r] = None
            else:
                for r in i.writes: st[r] = None
        elif i.kind in ('valu', 'trans'):
            for r in i.writes:
                if r[0] == 's' or r == 'vcc': st[r] = None
        if i.tag and hints and i.tag in hints: hints[i.tag](st)
        pc += 1
    return out

MFMA_PASSES = {'32x32x16': 8, '16x16x32': 4}
def passes(i):
    for k, p in MFMA_PASSES.items():
        if k in i.op: return p
    raise ValueError(i.op)

def check(tr, name=''):
    probs = []
    vm_q = []
    lg_q = []
    pend = {}
    last_w = {}
    last_mfma_c = {}
    store_pos = {}
    pos = 0
    smem_out = False
    def need(cond, msg):
        if not cond: probs.append(f"[{name}] pos {pos}: {msg}")
    for n, i in enumerate(tr):
        if i.kind == 'wait':
            vm, lg = parse_wait(i.text)
            if vm is not None:
                while len(vm_q) > vm:
                    x = vm_q.pop(0)
                    for r in x.writes:
                        if pend.get(r, (None, None))[1] is x: del pend[r]
            if lg is not None:
                if smem_out and lg != 0 and any(x.kind == 'smem' for x in lg_q):
                    pass
                while len(lg_q) > lg:
                    if lg != 0 and any(x.kind == 'smem' for x in lg_q): break
                    x = lg_q.pop(0)
                    for r in x.writes:
                        if pend.get(r, (None, None))[1] is x: del pend[r]
            pos += 1; continue
        if i.kind == 'nop':
            pos += int(i.ops[0], 0) + 1; continue
        for r in i.reads + i.writes:
            if r in pend:
                if r in i.writes and r not in i.reads and i.kind in ('dsread', 'vload') and pend[r][1].kind == i.kind: continue
                need(False, f"'{i.text}' touches {r} pending from '{pend[r][1].text}'")
        def dist(r):
            return pos - last_w[r][0] - 1 if r in last_w else 10**9
        if i.kind == 'mfma':
            for r in i.reads:
                if r in last_w:
                    w = last_w[r][1]; d = dist(r)
                    if w.kind in ('valu', 'trans'): need(d >= 2, f"VALU->MFMA {r} dist {d}: '{w.text}' -> '{i.text}'")
                    elif w.kind == 'mfma':
                        p = passes(w)
                        if r in i.srca or r in i.srcb: need(d >= p + 4, f"MFMA D->A/B {r} dist {d}: '{w.text}' -> '{i.text}'")
                        else:
                            same = (w.writes == i.srcc) and passes(w) == passes(i)
                            if not same: need(d >= p + 2, f"MFMA D->C overlap {r} dist {d}: '{w.text}' -> '{i.text}'")
            for r in i.writes:
                if r in last_w and last_w[r][1].kind == 'mfma' and r not in i.srcc:
                    w = last_w[r][1]; d = dist(r)
                    need(d >= passes(w) + 2 or True, "")
        else:
            for r in set(i.reads + i.writes):
                if r in last_w and last_w[r][1].kind == 'mfma':
                    w = last_w[r][1]; d = dist(r)
                    if i.kind in ('valu', 'trans', 'vstore', 'dswrite', 'dsread', 'vload', 'dma'):
                        need(d >= passes(w) + 4, f"MFMA D->{i.kind} {r} dist {d}: '{w.text}' -> '{i.text}'")
            if i.kind in ('valu', 'trans'):
                for r in i.writes:
                    if r in last_mfma_c:
                        p0, m = last_mfma_c[r]; d = pos - p0 - 1
                        need(d >= passes(m) - 1, f"MFMA srcC WAR {r} dist {d}: '{m.text}' -> '{i.text}'")
                    if r in store_pos:
                        d = pos - store_pos[r][0] - 1
                        need(d >= 2, f"store data WAR {r} dist {d}: '{store_pos[r][1].text}' -> '{i.text}'")
                for r in i.reads:
                    if r in last_w:
                        w = last_w[r][1]; d = dist(r)
                        if w.kind == 'trans' and i.kind == 'valu': need(d >= 1, f"trans->valu {r} dist {d}: '{w.text}' -> '{i.text}'")
                        if w.kind in ('valu', 'trans') and (r[0] == 's' or r == 'vcc') and r != 'scc':
                            if not i.op.startswith('v_readlane'): need(d >= 2, f"VALU sgpr/vcc -> VALU {r} dist {d}: '{w.text}' -> '{i.text}'")
                        if w.kind in ('valu', 'trans') and r[0] == 'v' and r != 'vcc' and i.op.startswith('v_permlane'):
                            need(d >= 2, f"VALU->permlane {r} dist {d}: '{w.text}' -> '{i.text}'")
                        if w.kind in ('valu', 'trans') and r[0] == 'v' and r != 'vcc' and i.op.startswith(('v_readfirstlane', 'v_readlane')):
                            need(d >= 1, f"VALU->readlane {r} dist {d}: '{w.text}' -> '{i.text}'")
                        if w.kind in ('valu','trans') and 'dpp' in i.text and r[0]=='v' and r!='vcc':
                            need(d >= 2, f"VALU->DPP {r} dist {d}")
            if i.kind in ('vload', 'vstore', 'dma'):
                for r in i.reads:
                    if r in last_w:
                        w = last_w[r][1]; d = dist(r)
                        if w.kind in ('valu', 'trans') and r[0] == 's': need(d >= 5, f"VALU sgpr->VMEM {r} dist {d}: '{w.text}' -> '{i.text}'")
                        if r == 'm0' and w.kind == 'salu': need(d >= 1, f"m0->DMA dist {d}: '{i.text}'")
            if i.kind == 'salu':
                for r in i.reads:
                    if r in last_w and last_w[r][1].kind in ('valu','trans') and r[0]=='s' and r!='scc':
                        need(dist(r) >= 1, f"VALU sgpr->SALU {r} dist {dist(r)} '{i.text}' (padding anyway)")
            if i.kind == 'branch' and i.reads and i.reads[0] == 'vcc':
                if 'vcc' in last_w and last_w['vcc'][1].kind in ('valu','trans'):
                    need(dist('vcc') >= 5 or True, "")
        if i.kind in ('vload', 'vstore', 'dma'):
            vm_q.append(i)
            while len(vm_q) > 63:
                x = vm_q.pop(0)
                for r in x.writes:
                    if pend.get(r, (None, None))[1] is x: del pend[r]
            for r in i.writes: pend[r] = ('vm', i)
            if i.kind == 'vstore' and ('x4' in i.op or 'x3' in i.op):
                for r in i.reads:
                    if r[0] in 'va' and r != 'vcc': store_pos[r] = (pos, i)
        elif i.kind in ('dsread', 'dswrite', 'smem'):
            lg_q.append(i)
            if i.kind == 'smem': smem_out = True
            for r in i.writes: pend[r] = ('lg', i)
        if i.kind == 'mfma':
            for r in i.srcc: last_mfma_c[r] = (pos, i)
        if i.kind in ('dsread', 'vload', 'smem'):
            for r in i.writes: last_w.pop(r, None)
        else:
            for r in i.writes: last_w[r] = (pos, i)
        pos += 1
    return probs

def max_regs(prog):
    mv = ma = ms = -1
    for i in prog.ins:
        for r in list(i.reads) + list(i.writes):
            if r in ('vcc', 'exec', 'm0', 'scc'): continue
            n = int(r[1:])
            if r[0] == 'v': mv = max(mv, n)
            elif r[0] == 'a': ma = max(ma, n)
            elif r[0] == 's': ms = max(ms, n)
    return mv, ma, ms

def kernel_text(name, prog, vgprs=None, agprs=0, sgprs=None, wgy=False):
    mv, ma, ms = max_regs(prog)
    nv = vgprs or (mv + 1)
    acc = (nv + 3) // 4 * 4
    na = max(agprs, ma + 1)
    total = acc + na if na > 0 else nv
    ns = sgprs or max(ms + 1, 16)
    txt = f".globl {name}\n.p2align 8\n.type {name},@function\n{name}:\n" + prog.text()
    kd = f""".amdhsa_kernel {name}
  .amdhsa_next_free_vgpr {total}
  .amdhsa_next_free_sgpr {ns}
  .amdhsa_accum_offset {acc}
  .amdhsa_group_segment_fixed_size 0
  .amdhsa_kernarg_size 96
  .amdhsa_user_sgpr_count 2
  .amdhsa_user_sgpr_kernarg_segment_ptr 1
  .amdhsa_system_sgpr_workgroup_id_x 1
.end_amdhsa_kernel
"""
    return txt, kd, (total, ns, acc)

def build_file(header_comment, launches, kernels):
    h = header_comment
    for (n, g, b, l) in launches:
        h += f"; @launch kernel={n} grid=({g},1,1) block=({b},1,1) lds={l}\n"
    h += '.amdgcn_target "amdgcn-amd-amdhsa--gfx950"\n.text\n'
    for t, kd in kernels: h += t
    h += '.section .rodata,"a"\n'
    for t, kd in kernels: h += '.p2align 6\n' + kd
    return h

class Wait(I):
    __slots__ = ('need',)
    def __init__(self, need, tag=None):
        I.__init__(self, "s_waitcnt lgkmcnt(0)", tag)
        self.need = list(need)

def regs_of(base, n, kind='v'): return [f"{kind}{base+i}" for i in range(n)]

def resolve_waits(body, pre=None):
    q = []
    for rep in range(3):
        for i in body:
            if isinstance(i, Wait):
                last = -1
                for n, x in enumerate(q):
                    if any(r in x.writes for r in i.need): last = n
                cnt = len(q) - 1 - last
                cnt = min(cnt, 15)
                if rep == 2:
                    i.text = f"s_waitcnt lgkmcnt({cnt})"
                while len(q) > cnt: q.pop(0)
            elif i.kind == 'wait':
                vm, lg = parse_wait(i.text)
                if lg is not None:
                    while len(q) > lg: q.pop(0)
            elif i.kind in ('dsread', 'dswrite'):
                q.append(i)
```

```python
from asmlib import *
from layout import *
import struct
def f32hex(x): return "0x%08x" % struct.unpack('<I', struct.pack('<f', x))[0]

V_LANE16, V_CUR, V_NXT, V_NEGM0, V_NEGM1, V_D, V_T0, V_T1, V_T2, V_T3, V_DMA0, V_DMA1, V_BIG, V_ZERO = range(1, 15)
V_FLAGA, V_FL0, V_FL1, V_FL2, V_ONE = 24+4, 24+5, 24+6, 24+7, 15
V_FDX, V_FDY = 224, 225
V_ONES = 16
V_L = 20
V_CI = 32
V_P = 48
V_O = 64
V_S = 128
V_Q = 160
V_RING = 192
NB = 8
S_KV = 4; S_QS = 8; S_CTX = 12
S_H, S_I, S_W, S_QT, S_NS, S_T1, S_DOFF, S_DEND, S_DLDS, S_NXB, S_TMP, S_TMP2, S_COFF, S_NSREM, S_THR, S_WL = range(16, 32)
S_RNEED, S_DNEED, S_NSF, S_N3 = 54, 55, 56, 57
STAGE = 32768
LDS_RING = 4 * STAGE
LDS_FLAG = LDS_RING
LDS_BYTES = LDS_RING + 2048
DBG = dict(sync='bar', sleep=1, prio=0, lprio=0, chk=True, add=True, flagrd=True)

def mf(d, a_, b_, c): return I(f"v_mfma_f32_16x16x32_bf16 {d}, {a_}, {b_}, {c}")
def Sreg(buf, kb, qb): return V_S + 16 * buf + 8 * kb + 4 * qb
def CIreg(kb, qb): return V_CI + 8 * kb + 4 * qb
def Preg(buf, qb): return V_P + 8 * buf + 4 * qb
def Oreg(db, qb): return V_O + 8 * db + 4 * qb
def Qreg(qb, ds): return V_Q + 16 * qb + 4 * ds
def koff(ktl, kb, ds): return ktl * 16384 + (kb * 4 + ds) * 1024
def voff(ktl, db): return ktl * 16384 + 8192 + db * 1024

def fixup_code(p, name):
    p(f"FIX_{name}:")
    p(f"s_cmp_eq_u32 s{S_NXB}, 0")
    p(f"s_cbranch_scc1 FIXT_{name}")
    for r in range(16): p(f"v_mov_b32 v{V_CI+r}, v{V_BIG}")
    p(f"s_mov_b32 s{S_T1}, 1000")
    p("s_nop 1")
    p(f"s_branch BACK_{name}")
    p(f"FIXT_{name}:")
    tri(p, V_NEGM0, V_NEGM1)
    p(f"s_mov_b32 s{S_T1}, 0")
    p(f"s_mov_b32 s{S_NXB}, 1")
    p("s_nop 1")
    p(f"s_branch BACK_{name}")

def tri(p, n0, n1):
    for r in range(4):
        p(f"v_cmp_le_i32 vcc, {r}, v{V_D}")
        p(f"v_mov_b32 v{CIreg(0,1)+r}, v{n1}")
        p(f"v_mov_b32 v{CIreg(1,0)+r}, v{V_BIG}")
        p(f"v_cndmask_b32 v{CIreg(0,0)+r}, v{V_BIG}, v{n0}, vcc")
        p(f"v_cndmask_b32 v{CIreg(1,1)+r}, v{V_BIG}, v{n1}, vcc")

def fix_check(name):
    return [I(f"s_sub_u32 s{S_T1}, s{S_T1}, 1"), I(f"s_cbranch_scc1 FIX_{name}"), I(f"BACK_{name}:")]

def dma_instr(d):
    return I(f"buffer_load_dwordx4 v{V_DMA0 if d < 4 else V_DMA1}, {s(S_KV,4)}, s{S_DOFF} offen offset:{(d%4)*1024} lds")
def dma_advance():
    return [I(f"s_add_u32 s{S_DOFF}, s{S_DOFF}, {STAGE}"),
            I(f"s_add_u32 s{S_DLDS}, s{S_DLDS}, {STAGE}"), I(f"s_and_b32 s{S_DLDS}, s{S_DLDS}, {LDS_RING-1}")]

def frag_src(it, pair):
    if pair < 8:
        kb, ds = pair // 4, pair % 4
        tile = it + 1
        base = V_CUR if tile < 2 else V_NXT
        assert tile < 4
        return base, koff(tile % 2, kb, ds)
    db = pair - 8
    assert it < 2
    return V_CUR, voff(it, db)

ORDER = [(0, 0, r) for r in range(4)] + [(0, 1, r) for r in range(4)] + [(1, 0, r) for r in range(4)] + [(1, 1, r) for r in range(4)]
WAITP = [0, 2, 4, 6, 9, 11, 13, 15]
CVTP = {8: 1, 10: 3, 12: 5, 14: 7, 16: 9, 1: 11, 3: 13, 5: 15}
F_READY, F_FAIL, F_DONE = 0, 256, 512
def spin_code(p, name, areg, off, sreg):
    p(f"SPIN_{name}:")
    if DBG.get('lstamp') or DBG.get('spincnt'): p(f"s_add_u32 s{68 if name[0]=='R' else 69}, s{68 if name[0]=='R' else 69}, 1")
    p(f"ds_read_b32 v{V_FL2}, v{areg} offset:{off}")
    p("s_waitcnt lgkmcnt(0)")
    p(f"v_cmp_gt_u32 vcc, s{sreg}, v{V_FL2}")
    p("s_nop 4")
    p(f"s_cbranch_vccnz SPIN_{name}", tag='spin')
    p(f"s_branch SPB_{name}")
SPINS = []
def flag_check(name, reg, areg, off, sreg):
    SPINS.append((name, areg, off, sreg))
    m = DBG.get('cm', 0)
    if m == 1: return [I(f"v_cmp_gt_u32 vcc, s{sreg}, v{reg}"), I(f"SPB_{name}:")]
    if m == 2: return [I(f"v_cmp_gt_u32 vcc, s{sreg}, v{reg}"), I("s_nop 0"), I("s_nop 0"), I("s_nop 0"), I("s_nop 0"), I(f"s_cbranch_vccnz SPIN_{name}", tag='spin'), I(f"SPB_{name}:")]
    if m == 3: return [I(f"v_readfirstlane_b32 s58, v{reg}"), I("s_nop 0"), I(f"s_cmp_gt_u32 s{sreg}, s58"), I(f"s_cbranch_scc1 SPIN_{name}", tag='spin'), I(f"SPB_{name}:")]
    return [I(f"v_cmp_gt_u32 vcc, s{sreg}, v{reg}"), I(f"s_cbranch_vccnz SPIN_{name}", tag='spin'), I(f"SPB_{name}:")]
def body(tag, dma, half, fix):
    RC, RN = (V_CUR, V_NXT) if half == 0 else (V_NXT, V_CUR)
    nm = f"{tag}{half}{int(fix)}"
    DA, DO = (V_FDY, F_DONE + 256) if half == 0 else (V_FDX, F_DONE)
    def src(it, pair):
        b, off = frag_src(it, pair)
        return (RC if b == V_CUR else RN), off
    def ringbuf(f): return V_RING + 4 * (f % NB)
    out = []
    for it in range(2):
        cur, nxt = it, 1 - it
        for pair in range(17):
            fidx = it * 16 + pair
            buf = ringbuf(fidx)
            if pair < 8:
                kb, ds = pair // 4, pair % 4
                ms = [mf(v(Sreg(nxt, kb, qb), 4), v(buf, 4), v(Qreg(qb, ds), 4),
                         v(CIreg(kb, qb), 4) if ds == 0 else v(Sreg(nxt, kb, qb), 4)) for qb in range(2)]
            elif pair < 16:
                db = pair - 8
                ms = [mf(v(Oreg(db, qb), 4), v(buf, 4), v(Preg(cur, qb), 4), v(Oreg(db, qb), 4)) for qb in range(2)]
            else:
                ms = [mf(v(V_L + 4 * qb, 4), v(V_ONES, 4), v(Preg(cur, qb), 4), v(V_L + 4 * qb, 4)) for qb in range(2)]
            g0 = []; g1 = []
            e = None
            if pair >= 6: e = (nxt,) + ORDER[pair - 6]
            elif pair <= 4: e = (cur,) + ORDER[11 + pair]
            if e:
                b_, kb_, qb_, r_ = e
                reg = Sreg(b_, kb_, qb_) + r_
                g0.append(I(f"v_exp_f32 v{reg}, v{reg}"))
            if pair == 5 and fix:
                g0 += [I(f"s_sub_u32 s{S_T1}, s{S_T1}, 1"), I(f"s_cbranch_scc1 FIX_{nm}{it}"), I(f"BACK_{nm}{it}:")]
            if it == 0 and pair == 5 and False:
                g0.append(I(f"ds_read_b32 v{V_FL0}, v{V_FLAGA} offset:{F_READY}"))
            if FL() and it == 0 and pair == DBG.get('fp', 1) and DBG['flagrd']:
                g1.append(I(f"ds_read_b32 v{V_FL0}, v{V_FLAGA} offset:{F_READY}"))
            if FL() and dma and it == 0 and pair == DBG.get('fp', 1):
                g1.append(I(f"ds_read_b32 v{V_FL1}, v{DA} offset:{DO}"))
            if pair < 16:
                nf = fidx + NB
                nit, npair = divmod(nf, 16)
                base, off = src(nit, npair)
                if pair in WAITP:
                    k = WAITP.index(pair)
                    nxtw = WAITP[k + 1] if k + 1 < len(WAITP) else WAITP[0] + 16
                    need = []
                    for f in range(fidx + 1, it * 16 + nxtw + 1): need += regs_of(ringbuf(f), 4)
                    if FL() and it == 0 and pair == 6: need.append(f"v{V_FL0}"); need.append(f"v{V_FL1}")
                    g1.append(Wait(need))
                if not FL() and it == 0 and pair == BARP:
                    if dma: g1.append(I("s_waitcnt vmcnt(8)"))
                    g1.append(I("s_barrier"))
                    if dma: g1.append(I(f"s_mov_b32 m0, s{S_DLDS}"))
                if FL() and it == 0 and pair == BARP:
                    if DBG.get('trace'):
                        g1 += [I(f"v_mov_b32 v226, s{S_RNEED}"), I(f"v_lshl_add_u32 v226, v226, 8, v{V_FL0}"), I(f"buffer_store_dword v226, v{V_ZERO}, s[72:75], s70 offen"), I("s_add_u32 s70, s70, 4")]
                    if DBG['chk']: g1 += flag_check(f"R{nm}", V_FL0, V_FLAGA, F_READY, S_RNEED)
                    if dma:
                        if DBG['add'] and DBG['chk']: g1 += flag_check(f"D{nm}", V_FL1, DA, DO, S_DNEED)
                        g1.append(I(f"s_mov_b32 m0, s{S_DLDS}"))
                if dma and it == 0 and pair > BARP and pair <= BARP + 4: g1.append(dma_instr(pair - BARP - 1))
                if dma and it == 1 and pair < 4: g1.append(dma_instr(4 + pair))
                g1.append(I(f"ds_read_b128 {v(buf,4)}, v{base} offset:{off}"))
                if dma and it == 0 and pair == BARP + 4: g1.append(I(f"s_add_u32 m0, s{S_DLDS}, 4096"))
                if FL() and it == 1 and pair == 7 and DBG['add']:
                    g1.append(I(f"ds_add_u32 v{V_FDX}, v{V_ONE} offset:{F_DONE + 256*half}"))
            if pair in CVTP:
                idx = CVTP[pair]; b_ = nxt if pair >= 6 else cur
                kb_, qb_, r_ = ORDER[idx]
                g1.append(I(f"v_cvt_pk_bf16_f32 v{Preg(b_, qb_) + 2*kb_ + r_//2}, v{Sreg(b_, kb_, qb_) + r_ - 1}, v{Sreg(b_, kb_, qb_) + r_}"))
            if FL() and dma and it == 1 and pair == 5:
                g1 += [I("s_waitcnt vmcnt(8)"), I(f"ds_add_u32 v{V_FLAGA}, v{V_ONE} offset:{F_READY}")]
            if dma and it == 1 and pair == 6:
                g1 += [I(f"s_add_u32 s{S_DOFF}, s{S_DOFF}, {STAGE}"), I(f"s_add_u32 s{S_DLDS}, s{S_DLDS}, {STAGE}"), I(f"s_and_b32 s{S_DLDS}, s{S_DLDS}, {LDS_RING-1}")]
            if FL() and dma and it == 1 and pair == 9:
                g1 += [I(f"s_add_u32 s{S_N3}, s{S_N3}, 1"), I(f"s_andn2_b32 s{S_DNEED}, s{S_N3}, 3"), I(f"s_lshl_b32 s{S_DNEED}, s{S_DNEED}, 1")]
            if FL() and half == 1 and it == 1 and pair == 12: g1.append(I(f"v_xor_b32 v{V_FDX}, 512, v{V_FDX}"))
            if FL() and dma and half == 1 and it == 1 and pair == 13: g1.append(I(f"v_xor_b32 v{V_FDY}, 512, v{V_FDY}"))
            if FL() and it == 0 and pair == 16: g1.append(I(f"s_add_u32 s{S_RNEED}, s{S_RNEED}, 4"))
            if DBG.get('tstamp') and it == 0 and pair == 16: g1.append(I("s_memtime s[76:77]"))
            if DBG.get('tstamp') and it == 1 and pair == 16:
                g1 += [I("s_waitcnt lgkmcnt(8)"), I(f"v_mov_b32 v226, s76"), I(f"buffer_store_dword v226, v{V_ZERO}, s[72:75], s70 offen"), I("s_add_u32 s70, s70, 4")]
            if it == 1 and pair == 16:
                g1.append(I(f"v_xor_b32 v{RC}, {2*STAGE}, v{RC}"))
            out.append(ms[0]); out += g0; out.append(ms[1]); out += g1
    return out
def FL(): return DBG['sync'] == 'flag'
def superbody(tag, dma, fix):
    b = body(tag, dma, 0, fix) + body(tag, dma, 1, fix)
    resolve_waits(b)
    return b
def NB_eff(): return NB
BARP = 16 - NB

def setup_common(p, timing):
    p("s_cmp_ge_u32 s2, 256")
    p("s_cbranch_scc1 END")
    p(f"s_load_dwordx2 s[34:35], s[0:1], {KA_WS}")
    if timing:
        p(f"s_load_dwordx2 s[36:37], s[0:1], {KA_OUT}")
        p("s_memtime s[40:41]")
        p("s_memrealtime s[50:51]")
    p(f"v_and_b32 v{V_T0}, 63, v0")
    p(f"v_lshlrev_b32 v{V_LANE16}, 4, v{V_T0}")
    p(f"v_and_b32 v{V_T1}, 0x3ff, v0")
    p(f"v_lshrrev_b32 v{V_T1}, 6, v{V_T1}")
    p(f"s_and_b32 s{S_TMP}, s2, 7")
    p(f"s_lshl_b32 s{S_TMP}, s{S_TMP}, 2")
    p(f"v_readfirstlane_b32 s{S_W}, v{V_T1}", tag='wave')
    p(f"s_bfe_u32 s{S_H}, s2, 0x20003")
    p(f"s_add_u32 s{S_H}, s{S_H}, s{S_TMP}")
    p(f"s_lshr_b32 s{S_I}, s2, 5")
    p(f"v_and_b32 v{V_T1}, 15, v{V_T0}")
    p(f"v_lshrrev_b32 v{V_T2}, 4, v{V_T0}")
    p(f"v_lshlrev_b32 v{V_T2}, 2, v{V_T2}")
    p(f"v_sub_u32 v{V_D}, v{V_T1}, v{V_T2}")
    p(f"v_mov_b32 v{V_BIG}, {f32hex(-1e30)}")
    p(f"v_mov_b32 v{V_ZERO}, 0")
    p(f"v_mov_b32 v{V_ONE}, 1")
    p(f"v_lshlrev_b32 v{V_FLAGA}, 2, v{V_T0}")
    p(f"v_add_u32 v{V_FLAGA}, {LDS_FLAG}, v{V_FLAGA}")
    for r in range(4): p(f"v_mov_b32 v{V_ONES+r}, 0x3f803f80")
    p(f"s_mov_b32 s{S_THR}, {f32hex(2.0**40)}")
    p(f"s_and_b32 s{S_WL}, s{S_W}, 3")
    p(f"s_lshl_b32 s{S_TMP}, s{S_WL}, 13")
    p(f"v_add_u32 v{V_DMA0}, s{S_TMP}, v{V_LANE16}")
    p(f"v_add_u32 v{V_DMA1}, 4096, v{V_DMA0}")
    p("s_waitcnt lgkmcnt(0)")
    p(f"s_lshl_b32 s{S_TMP2}, s{S_H}, 20")
    if DBG.get('samehead'): p(f"s_mov_b32 s{S_TMP2}, 0")
    p(f"s_add_u32 s{S_KV}, s34, s{S_TMP2}")
    p(f"s_addc_u32 s{S_KV+1}, s35, 0")
    p(f"s_mov_b32 s{S_KV+2}, {1<<20}")
    p(f"s_mov_b32 s{S_KV+3}, 0x20000")
    p(f"s_add_u32 s{S_QS}, s34, {WS_QB}")
    p(f"s_addc_u32 s{S_QS+1}, s35, 0")
    p(f"s_mov_b32 s{S_QS+2}, {16*MB}")
    p(f"s_mov_b32 s{S_QS+3}, 0x20000")
    p(f"s_add_u32 s{S_CTX}, s34, {WS_CTXB}")
    p(f"s_addc_u32 s{S_CTX+1}, s35, 0")
    p(f"s_mov_b32 s{S_CTX+2}, {16*MB}")
    p(f"s_mov_b32 s{S_CTX+3}, 0x20000")
    p(f"s_sub_u32 s{S_TMP}, 16, s{S_I}")
    p(f"s_lshl_b32 s{S_DEND}, s{S_TMP}, 16")
    p(f"s_lshl_b32 s{S_TMP}, s{S_TMP}, 1")
    p(f"s_add_u32 s{S_TMP2}, s{S_I}, 1")
    p(f"s_lshl_b32 s{S_TMP2}, s{S_TMP2}, 1")
    p(f"s_sub_u32 s{S_NSREM}, s{S_TMP}, s{S_TMP2}")
    p(f"s_cmp_ge_u32 s{S_W}, 4")
    p(f"s_cselect_b32 s{S_NS}, s{S_TMP2}, s{S_TMP}")
    p(f"s_sub_u32 s{S_TMP}, 15, s{S_I}")
    p(f"s_cselect_b32 s{S_QT}, s{S_I}, s{S_TMP}".replace("s_cselect", "s_cselect"))

def gen(name="battn_kernel", timing=False):
    p = Prog()
    del SPINS[:]
    setup_common(p, timing)
    p.ins.pop()
    p(f"s_cmp_ge_u32 s{S_W}, 4")
    p(f"s_cselect_b32 s{S_QT}, s{S_I}, s{S_TMP}")
    p(f"s_lshl_b32 s{S_QT}, s{S_QT}, 2")
    p(f"s_add_u32 s{S_QT}, s{S_QT}, s{S_WL}")
    p(f"s_lshl_b32 s{S_TMP}, s{S_H}, 19")
    p(f"s_lshl_b32 s{S_TMP2}, s{S_QT}, 13")
    p(f"s_add_u32 s{S_TMP2}, s{S_TMP2}, s{S_TMP}")
    p(f"s_lshl_b32 s{S_DLDS}, s{S_WL}, 13")
    p(f"s_mov_b32 s{S_DOFF}, 0")
    p(f"s_cmp_ge_u32 s{S_W}, 4")
    p("s_cbranch_scc0 HI_PRO")
    def stage_dma():
        for d in range(8):
            if d % 4 == 0:
                p(f"s_mov_b32 m0, s{S_DLDS}" if d == 0 else f"s_add_u32 m0, s{S_DLDS}, 4096")
                p("s_nop 0")
            p.add(dma_instr(d))
        p.add(dma_advance())
    def qload():
        for k in range(8):
            if k == 4: p(f"s_add_u32 s{S_TMP2}, s{S_TMP2}, 4096")
            p(f"buffer_load_dwordx4 {v(V_Q+4*k,4)}, v{V_LANE16}, {s(S_QS,4)}, s{S_TMP2} offen offset:{(k%4)*1024}")
    stage_dma(); qload(); stage_dma(); stage_dma()
    p("s_waitcnt vmcnt(16)")
    p("s_branch PRO_JOIN")
    p("HI_PRO:")
    qload()
    for off in (F_READY, F_FAIL, F_DONE, F_DONE+256, F_DONE+512, F_DONE+768): p(f"ds_write_b32 v{V_FLAGA}, v{V_ZERO} offset:{off}")
    p("s_waitcnt vmcnt(0) lgkmcnt(0)")
    p("PRO_JOIN:")
    p(f"v_mov_b32 v{V_CUR}, v{V_LANE16}")
    p(f"v_add_u32 v{V_NXT}, {STAGE}, v{V_LANE16}")
    p(f"s_mov_b32 s{S_RNEED}, 4")
    p(f"s_mov_b32 s{S_DNEED}, 0")
    p(f"s_mov_b32 s{S_N3}, 3")
    if DBG.get('trace') or DBG.get('tstamp'):
        p("s_mov_b32 s72, s36")
        p("s_mov_b32 s73, s37")
        p("s_mov_b32 s74, 0x400000")
        p("s_mov_b32 s75, 0x20000")
        p(f"s_lshl_b32 s70, s2, 3")
        p(f"s_add_u32 s70, s70, s{S_W}")
        p("s_lshl_b32 s70, s70, 8")
        p("s_add_u32 s70, s70, 0x100000")
    p("s_mov_b32 s68, 0")
    p("s_mov_b32 s69, 0")
    p(f"v_mov_b32 v{V_FDX}, v{V_FLAGA}")
    p(f"v_xor_b32 v{V_FDY}, 512, v{V_FLAGA}")
    p("s_barrier")
    if timing:
        p("s_memtime s[42:43]")
        p("s_waitcnt lgkmcnt(0)")
    p(f"s_cmp_eq_u32 s{S_QT}, 0")
    p("s_cbranch_scc1 P0_TRI")
    for r in range(16): p(f"v_mov_b32 v{V_CI+r}, 0")
    p("P0_GO:")
    for f in range(8): p(f"ds_read_b128 {v(V_O+4*f,4)}, v{V_CUR} offset:{koff(0, f//4, f%4)}")
    for r in range(8): p(f"v_mov_b32 v{V_L+r}, 0")
    for f in range(8):
        kb, ds = f // 4, f % 4
        p(f"s_waitcnt lgkmcnt({7-f})")
        for qb in range(2):
            p.add(mf(v(Sreg(0, kb, qb), 4), v(V_O + 4 * f, 4), v(Qreg(qb, ds), 4), v(CIreg(kb, qb), 4) if ds == 0 else v(Sreg(0, kb, qb), 4)))
    for f in range(NB):
        base, off = frag_src(0, f)
        p(f"ds_read_b128 {v(V_RING+4*f,4)}, v{base} offset:{off}")
    if FL():
        p(f"s_cmp_ge_u32 s{S_W}, 4")
        p("s_cbranch_scc0 P0_NOPOST")
        p("s_waitcnt vmcnt(8)")
        p(f"ds_add_u32 v{V_FLAGA}, v{V_ONE} offset:{F_READY}")
        p("P0_NOPOST:")
    for r in range(32, 64): p(f"v_mov_b32 v{V_O+r}, 0")
    for r in range(0, 32): p(f"v_mov_b32 v{V_O+r}, 0")
    for qb in range(2):
        a0, a1 = Sreg(0, 0, qb), Sreg(0, 1, qb)
        t = V_T0 + qb
        p(f"v_max3_f32 v{t}, v{a0}, v{a0+1}, v{a0+2}")
        p(f"v_max3_f32 v{t}, v{t}, v{a0+3}, v{a1}")
        p(f"v_max3_f32 v{t}, v{t}, v{a1+1}, v{a1+2}")
        p(f"v_max_f32 v{t}, v{t}, v{a1+3}")
    for swp in ("v_permlane32_swap_b32", "v_permlane16_swap_b32"):
        p(f"v_mov_b32 v{V_T2}, v{V_T0}")
        p(f"v_mov_b32 v{V_T3}, v{V_T1}")
        p("s_nop 1")
        p(f"{swp} v{V_T0}, v{V_T2}")
        p(f"{swp} v{V_T1}, v{V_T3}")
        p("s_nop 1")
        p(f"v_max_f32 v{V_T0}, v{V_T0}, v{V_T2}")
        p(f"v_max_f32 v{V_T1}, v{V_T1}, v{V_T3}")
    p(f"v_sub_f32 v{V_NEGM0}, {f32hex(-BIAS)}, v{V_T0}")
    p(f"v_sub_f32 v{V_NEGM1}, {f32hex(-BIAS)}, v{V_T1}")
    for kb in range(2):
        for qb in range(2):
            for r in range(4):
                n = V_NEGM0 + qb
                p(f"v_add_f32 v{Sreg(0,kb,qb)+r}, v{n}, v{Sreg(0,kb,qb)+r}")
                p(f"v_mov_b32 v{CIreg(kb,qb)+r}, v{n}")
    for k in range(11):
        kb, qb, r = ORDER[k]; p(f"v_exp_f32 v{Sreg(0,kb,qb)+r}, v{Sreg(0,kb,qb)+r}")
    p("s_nop 0")
    for idx in (1, 3, 5, 7, 9):
        kb, qb, r = ORDER[idx]
        p(f"v_cvt_pk_bf16_f32 v{Preg(0,qb)+2*kb+r//2}, v{Sreg(0,kb,qb)+r-1}, v{Sreg(0,kb,qb)+r}")
    p(f"s_cmp_eq_u32 s{S_QT}, 0")
    p(f"s_cselect_b32 s{S_NXB}, 1, 0")
    p(f"s_max_u32 s{S_T1}, s{S_QT}, 1")
    p(f"s_sub_u32 s{S_T1}, s{S_T1}, 1")
    p.add(fix_check("P"))
    p(f"s_lshr_b32 s{S_NS}, s{S_NS}, 1")
    p(f"s_sub_u32 s{S_NSF}, s{S_NS}, 2")
    p(f"s_cselect_b32 s{S_NSF}, 0, s{S_NSF}")
    p(f"s_sub_u32 s{S_NS}, s{S_NS}, s{S_NSF}")
    p(f"s_lshl_b32 s{S_TMP}, s{S_NSF}, 2")
    p(f"s_sub_u32 s{S_T1}, s{S_T1}, s{S_TMP}")
    p(f"s_waitcnt lgkmcnt({NB-3})")
    p(f"s_cmp_ge_u32 s{S_W}, 4")
    p("s_cbranch_scc1 LO_START")
    if DBG['prio']: p(f"s_setprio {DBG['prio']}")
    for tag, dma in (("H", False), ("L", True)):
        if dma:
            p("LO_START:")
            if DBG.get('loprio'): p(f"s_setprio {DBG['loprio']}")
        p(f"s_cmp_eq_u32 s{S_NSF}, 0")
        p(f"s_cbranch_scc1 FIXL_{tag}")
        p(f"s_sub_u32 s{S_NSF}, s{S_NSF}, 1")
        p(f"LOOP_{tag}:")
        p.add(superbody(tag, dma, False))
        p(f"s_sub_u32 s{S_NSF}, s{S_NSF}, 1")
        p(f"s_cbranch_scc0 LOOP_{tag}")
        p(f"FIXL_{tag}:")
        p(f"s_sub_u32 s{S_NS}, s{S_NS}, 1")
        p(f"LOOPF_{tag}:")
        p.add(superbody(tag, dma, True))
        p(f"s_sub_u32 s{S_NS}, s{S_NS}, 1")
        p(f"s_cbranch_scc0 LOOPF_{tag}")
        if not dma: p("s_branch EPI")
    def stamp(acc):
        if DBG.get('lstamp'):
            p("s_memtime s[60:61]")
            p("s_waitcnt lgkmcnt(0)")
            p("s_sub_u32 s63, s60, s62")
            p("s_mov_b32 s62, s60")
            if acc: p(f"s_add_u32 s{acc}, s{acc}, s63")
    def loader_step(nm):
        if not FL():
            p("s_waitcnt vmcnt(8)")
            p("s_barrier")
            for d in range(8):
                if d % 4 == 0:
                    p(f"s_mov_b32 m0, s{S_DLDS}" if d == 0 else f"s_add_u32 m0, s{S_DLDS}, 4096")
                    p("s_nop 0")
                p.add(dma_instr(d))
            p.add(dma_advance())
            return
        p(f"s_and_b32 s{S_TMP}, s{S_N3}, 3")
        p(f"s_lshl_b32 s{S_TMP}, s{S_TMP}, 8")
        p(f"v_add_u32 v{V_T2}, s{S_TMP}, v{V_FLAGA}")
        p(f"s_add_u32 s{S_TMP}, s{S_N3}, 1")
        p(f"s_and_b32 s{S_TMP}, s{S_TMP}, 3")
        p(f"s_lshl_b32 s{S_TMP}, s{S_TMP}, 8")
        p(f"v_add_u32 v{V_T3}, s{S_TMP}, v{V_FLAGA}")
        stamp(67)
        if DBG.get('paced'):
            p(f"s_sleep {DBG['paced']}")
        p(f"s_branch SPE_X{nm}")
        p(f"SPB_X{nm}:")
        if DBG['sleep']: p(f"s_sleep {DBG['sleep']}")
        p(f"SPE_X{nm}:")
        p(f"ds_read_b32 v{V_FL2}, v{V_T2} offset:{F_DONE}")
        p("s_waitcnt lgkmcnt(0)")
        p(f"v_cmp_gt_u32 vcc, s{S_DNEED}, v{V_FL2}")
        p("s_nop 4")
        if DBG['add'] and not DBG.get('paced'): p(f"s_cbranch_vccnz SPB_X{nm}", tag='spin')
        stamp(64)
        for d in range(8):
            if d % 4 == 0:
                p(f"s_mov_b32 m0, s{S_DLDS}" if d == 0 else f"s_add_u32 m0, s{S_DLDS}, 4096")
                p("s_nop 0")
            if not DBG.get('noldma'): p.add(dma_instr(d))
            if DBG.get('dsl'): p(f"s_sleep {DBG['dsl']}")
        p.add(dma_advance())
        p(f"s_add_u32 s{S_N3}, s{S_N3}, 1")
        p(f"s_andn2_b32 s{S_DNEED}, s{S_N3}, 3")
        p(f"s_lshl_b32 s{S_DNEED}, s{S_DNEED}, 1")
        stamp(65)
        p("s_waitcnt vmcnt(8)")
        stamp(66)
        p(f"ds_add_u32 v{V_FLAGA}, v{V_ONE} offset:{F_READY}")
        p(f"ds_add_u32 v{V_T3}, v{V_ONE} offset:{F_DONE}")
    if DBG.get('lstamp'):
        for r in (64, 65, 66, 67): p(f"s_mov_b32 s{r}, 0")
        p("s_memtime s[60:61]")
        p("s_waitcnt lgkmcnt(0)")
        p("s_mov_b32 s62, s60")
    if DBG['lprio'] is not None: p(f"s_setprio {DBG['lprio']}")
    loader_step("0")
    p(f"s_sub_u32 s{S_NSREM}, s{S_NSREM}, 1")
    p("EPI:")
    p("s_waitcnt lgkmcnt(0)")
    p(f"v_mov_b32 v{V_T1}, s{S_THR}")
    p("s_nop 4")
    p(f"v_cmp_nlt_f32 vcc, v{V_L}, v{V_T1}")
    p(f"v_cmp_nlt_f32 s[38:39], v{V_L+4}, v{V_T1}")
    p(f"v_rcp_f32 v{V_T0}, v{V_L}")
    p(f"v_rcp_f32 v{V_T1}, v{V_L+4}")
    p("s_nop 1")
    p("s_or_b64 vcc, vcc, s[38:39]")
    p("s_nop 4")
    p("s_cbranch_vccnz SETFLAG", tag='flag')
    p("FLAGBACK:")
    p(f"s_lshl_b32 s{S_COFF}, s{S_QT}, 5")
    p(f"s_add_u32 s{S_COFF}, s{S_COFF}, s{S_H}")
    p(f"s_lshl_b32 s{S_COFF}, s{S_COFF}, 13")
    tmp = V_S
    for qb in range(2):
        for dsx in range(4):
            t = tmp + 4 * ((qb * 4 + dsx) % 8)
            inv = V_T0 + qb
            for half in range(2):
                o = Oreg(2 * dsx + half, qb)
                for r in range(4): p(f"v_mul_f32 v{o+r}, v{inv}, v{o+r}")
                p(f"v_cvt_pk_bf16_f32 v{t+2*half}, v{o}, v{o+1}")
                p(f"v_cvt_pk_bf16_f32 v{t+2*half+1}, v{o+2}, v{o+3}")
            if qb == 1 and dsx == 0: p(f"s_add_u32 s{S_COFF}, s{S_COFF}, 4096")
            p(f"buffer_store_dwordx4 {v(t,4)}, v{V_LANE16}, {s(S_CTX,4)}, s{S_COFF} offen offset:{dsx*1024}")
    p(f"s_cmp_ge_u32 s{S_W}, 4")
    p("s_cbranch_scc0 DONE")
    p(f"s_cmp_eq_u32 s{S_NSREM}, 0")
    p("s_cbranch_scc1 DONE")
    p("LOADER:")
    loader_step("1")
    p(f"s_sub_u32 s{S_NSREM}, s{S_NSREM}, 1")
    p(f"s_cmp_lg_u32 s{S_NSREM}, 0")
    p("s_cbranch_scc1 LOADER")
    p("DONE:")
    if timing: p("s_memtime s[44:45]")
    p("s_waitcnt vmcnt(0) lgkmcnt(0)")
    if timing:
        p("s_memtime s[46:47]")
        p("s_memrealtime s[52:53]")
        p("s_waitcnt lgkmcnt(0)")
        p("s_sub_u32 s42, s42, s40")
        p("s_sub_u32 s44, s44, s40")
        p("s_sub_u32 s46, s46, s40")
        p("s_sub_u32 s48, s52, s50")
        p("s_mov_b32 s38, 0x100000")
        p("s_mov_b32 s39, 0x20000")
        if DBG.get('lstamp'):
            p(f"s_cmp_ge_u32 s{S_W}, 4")
            p("s_cbranch_scc0 NOLS")
            p("s_mov_b32 s42, s64")
            p("s_mov_b32 s44, s65")
            p("s_mov_b32 s46, s66")
            p("s_mov_b32 s48, s67")
            p("s_branch NOLS2")
            p("NOLS:")
            p("s_mov_b32 s42, s68")
            p("NOLS2:")
        if DBG.get('spincnt'): p("s_mov_b32 s42, s68")
        p("v_mov_b32 v64, s42")
        p("v_mov_b32 v65, s44")
        p("v_mov_b32 v66, s46")
        p("v_mov_b32 v67, s48")
        p(f"s_lshl_b32 s{S_TMP}, s2, 3")
        p(f"s_add_u32 s{S_TMP}, s{S_TMP}, s{S_W}")
        p(f"s_lshl_b32 s{S_TMP}, s{S_TMP}, 4")
        p("v_mov_b32 v68, 0")
        p("s_nop 1")
        p(f"buffer_store_dwordx4 v[64:67], v68, s[36:39], s{S_TMP} offen")
        p("s_waitcnt vmcnt(0)")
    p("s_endpgm")
    p("P0_TRI:")
    tri(p, V_ZERO, V_ZERO)
    p("s_branch P0_GO")
    for nm in ([a+b+"1"+c for a in "HL" for b in "01" for c in "01"] + ["P"]): fixup_code(p, nm)
    for nm, areg, off, sreg in SPINS: spin_code(p, nm, areg, off, sreg)
    p("SETFLAG:")
    p(f"ds_write_b32 v{V_FLAGA}, v{V_ONE} offset:{F_FAIL}")
    p("s_branch FLAGBACK")
    p("END:")
    p("s_endpgm")
    return p

if __name__ == "__main__":
    p = gen()
    for wid in (0, 255, 100):
        for w in (0, 3, 4, 7):
            tr = trace(p, {'s2': wid}, hints={'wave': lambda st, w=w: st.__setitem__(f's{S_W}', w)})
            pr = check(tr, f"wg{wid}w{w}")
            nm = sum(1 for i in tr if i.kind == 'mfma')
            nr = sum(1 for i in tr if i.op == 'ds_add_u32' and 'offset:0' in i.text)
            nd = sum(1 for i in tr if i.op == 'ds_add_u32' and 'offset:0' not in i.text)
            print(wid, w, len(tr), "mfma", nm, "ready posts", nr, "done posts", nd, "problems", len(pr))
            for x in pr[:2]: print("   ", x[:220])
    print(max_regs(p), len(p.ins))
```

```python
from asmlib import *
import struct
def f32hex(x): return "0x%08x" % struct.unpack('<I', struct.pack('<f', x))[0]
def mf(d, a_, b_, c): return I(f"v_mfma_f32_16x16x32_bf16 {d}, {a_}, {b_}, {c}")

DBG = {}
class Cfg:
    def __init__(self, **kw): self.__dict__.update(kw)

def read_sched(nfb):
    G = 2 * nfb
    rd = {n: [] for n in range(G)}
    rd[0] += [2, 3]
    for n in range(1, G - 3): rd[n].append(n + 3)
    rd[G - 2].append(G)
    rd[G - 1].append(G + 1)
    return rd

def chunk_body(c):
    nfb, ntb = c.nfb, c.ntb
    G = 2 * nfb; NB_ = G - 2
    assert nfb >= 3
    ro = getattr(c, 'ring_off', 0)
    rs = read_sched(nfb)
    def xbuf(s_, tb): return c.XF + (s_ % 2) * 4 * ntb + 4 * tb
    def wbuf(m): return c.WR + 4 * ((m + ro) % 4)
    upd_at = {}
    for reg, fbs in c.wregs:
        cur = [n for n in range(G) for m in rs[n] if m < G and m % nfb in fbs]
        nxt = [n for n in range(G) for m in rs[n] if m >= G and m % nfb in fbs]
        last = max(cur)
        if nxt: assert min(nxt) > last
        upd_at.setdefault(last, []).append(reg)
    last_delta_use = max(list(upd_at) + [c.x1upd])
    dma = [list(x) for x in c.dma]
    dma_at = {}
    seq = list(range(0, G - 2))
    assert len(dma) <= len(seq)
    for k, g in enumerate(dma): dma_at[seq[k]] = g
    salu = list(c.salu); tail = list(c.tail_salu)
    last_salu_plan = min(NB_ - 1, c.salu_from + len(salu) - 1) if salu else -1
    out = []
    for n in range(G):
        s_, fb = divmod(n, nfb)
        ms = []
        for tb in range(ntb):
            d = v(c.acc(fb, tb), 4); w = v(wbuf(n), 4); x = v(xbuf(s_, tb), 4)
            ms.append(mf(d, w, x, d) if c.orient(fb) == 'K' else mf(d, x, w, d))
        gaps = [[] for _ in range(ntb)]
        L = ntb - 1
        if n == NB_:
            gaps[0] += [I(f"s_waitcnt vmcnt({c.vmw}) lgkmcnt(0)" if c.vmw is not None else "s_waitcnt lgkmcnt(0)"), I("s_barrier")] + list(c.post_barrier)
            for tb in range(ntb):
                gaps[min(tb, L)].append(I(f"ds_read_b128 {v(xbuf(0, tb),4)}, v{c.vX[0]} offset:{c.xoff(tb)}"))
        k = 0
        for m in rs[n]:
            mfb = m % nfb; ss = (m // nfb) % 2
            offs = c.woff(mfb) + ss * c.wstep
            gaps[min(k, L)].append(I(f"ds_read_b64_tr_b16 {v(wbuf(m),2)}, v{c.vW(mfb)} offset:{offs}")); k += 1
            gaps[min(k, L)].append(I(f"ds_read_b64_tr_b16 {v(wbuf(m)+2,2)}, v{c.vW(mfb)} offset:{offs + c.wsec}")); k += 1
        if s_ == 0:
            for tb in range(ntb):
                if fb == c.xgrp(tb): gaps[min(2, L)].append(I(f"ds_read_b128 {v(xbuf(1, tb),4)}, v{c.vX[1]} offset:{c.xoff(tb)}"))
        if n in dma_at: gaps[min(2, L)] += [x for x in dma_at[n] if not (DBG.get('nodma') and x.kind == 'dma')]
        for reg in upd_at.get(n, []): gaps[L].append(I(f"v_add_u32 v{reg}, s{c.s_delta}, v{reg}"))
        if n == 1: gaps[L].append(I(f"v_add_u32 v{c.vX[0]}, s{c.s_delta}, v{c.vX[0]}"))
        if n == c.x1upd: gaps[L].append(I(f"v_add_u32 v{c.vX[1]}, s{c.s_delta}, v{c.vX[1]}"))
        if salu and n >= c.salu_from and n < NB_:
            k2 = -(-len(c.salu) // (NB_ - c.salu_from))
            for _ in range(k2):
                if salu:
                    x = salu.pop(0); gaps[L] += (x if isinstance(x, list) else [x]); last_salu = n
        t0 = max(last_delta_use, last_salu_plan)
        if tail and n > t0:
            k2 = -(-len(c.tail_salu) // (G - 1 - t0))
            for _ in range(k2):
                if tail: gaps[min(1, L)].append(tail.pop(0))
        if hasattr(c, 'extra'): gaps[min(1, L)] += c.extra(n)
        need = regs_of(wbuf(n + 1), 4)
        if n == nfb - 1:
            for tb in range(ntb): need += regs_of(xbuf(1, tb), 4)
        if n == G - 1:
            for tb in range(ntb): need += regs_of(xbuf(0, tb), 4)
        if n != NB_ - 0 or True:
            gaps[L].insert(0, Wait(need)) if n + 1 != NB_ + 0 or True else None
        for mm, gg in zip(ms, gaps):
            out.append(mm); out += gg
    assert not salu and not tail, (len(salu), len(tail))
    if DBG.get('notr'): out = [x for x in out if not x.op.startswith('ds_read_b64_tr')]
    if DBG.get('nox'): out = [x for x in out if not x.op.startswith('ds_read_b128')]
    if DBG.get('nobar'): out = [x for x in out if x.kind != 'barrier']
    if not getattr(c, 'no_resolve', False): resolve_waits(out)
    return out

def preload(c):
    out = []
    for tb in range(c.ntb):
        out.append(I(f"ds_read_b128 {v(c.XF + 4*tb,4)}, v{c.vX[0]} offset:{c.xoff(tb)}"))
    for m in range(2):
        offs = c.woff(m % c.nfb)
        out.append(I(f"ds_read_b64_tr_b16 {v(c.WR + 4*m,2)}, v{c.vW(m)} offset:{offs}"))
        out.append(I(f"ds_read_b64_tr_b16 {v(c.WR + 4*m + 2,2)}, v{c.vW(m)} offset:{offs + c.wsec}"))
    return out
```

```python
from asmlib import *
from layout import *
from gemm16 import *

SLOT = 49152
XB_OFF = 16384
XA_OFF = 24576
LDS_BYTES = 3 * SLOT
NTHREADS = 320
V_T0, V_T1, V_T2, V_T3, V_LANE16, V_X0, V_X1 = 1, 2, 3, 4, 5, 6, 7
V_W = 8
V_DX0, V_DX1, V_DW0, V_DW1 = 16, 17, 18, 19
V_ST0, V_ST1 = 30, 31
V_LANE = 32
V_TMP = 36
V_ONESR = 52
V_ACC = 64
V_XF = 192
V_WR = 224
S_XS = 4; S_WS = 8; S_OS = 12
S_H, S_T, S_W, S_CNT, S_D0, S_D1, S_D2, S_DST, S_XO, S_WO, S_TMP, S_TMP2, S_J, S_TG, S_OO, S_SO = range(16, 32)
S_CKV, S_WUK, S_WUV, S_AX, S_AW, S_WSP, S_BX, S_WQ = 36, 38, 40, 42, 44, 46, 48, 50
S_PASS = 33
CQB = 128 ** -0.5 * LOG2E
CQA = 16 ** -0.5 * LOG2E

def rot_delta():
    return [I(f"s_mov_b32 s{S_TMP}, s{S_D0}"), I(f"s_mov_b32 s{S_D0}, s{S_D1}"), I(f"s_mov_b32 s{S_D1}, s{S_D2}"), I(f"s_mov_b32 s{S_D2}, s{S_TMP}")]

def cfgB(orient):
    return Cfg(nfb=8, ntb=4, acc=lambda fb, tb: V_ACC + 16 * fb + 4 * tb, orient=lambda fb: orient,
               vX=[V_X0, V_X1], xoff=lambda tb: XB_OFF + tb * 2048, XF=V_XF,
               vW=lambda fb: V_W + fb, woff=lambda fb: 0, wstep=8192, wsec=1024,
               wregs=[(V_W + fb, [fb]) for fb in range(8)], WR=V_WR, xgrp=lambda tb: 1 + tb, x1upd=6,
               s_delta=S_D0, vmw=None, dma=[], salu=[], salu_from=12, post_barrier=[], tail_salu=rot_delta())
def cfgA(par):
    return Cfg(nfb=3, ntb=4, acc=lambda fb, tb: V_ACC + 16 * fb + 4 * tb, orient=lambda fb: 'V' if fb == 2 else 'K',
               vX=[V_X0, V_X1], xoff=lambda tb: XA_OFF + tb * 2048, XF=V_XF,
               vW=lambda fb: V_W, woff=lambda fb: fb * 8192, wstep=32 * 128, wsec=4 * 128,
               wregs=[(V_W, [0, 1, 2])], WR=V_WR, xgrp=lambda tb: tb // 2, x1upd=2,
               s_delta=S_D0, vmw=None, dma=[], salu=[], salu_from=3, post_barrier=[], tail_salu=rot_delta(),
               ring_off=6 * par % 4, no_resolve=True)

def loader_batchB(p):
    for i in range(32):
        if i % 4 == 0: p(f"s_add_u32 m0, s{S_DST}, {XB_OFF + i*1024}")
        p(f"s_add_u32 s{S_SO}, s{S_XO}, {i*8192 - (i%4)*1024}")
        p(f"buffer_load_dwordx4 v{V_DX0 + (i%2)}, {s(S_XS,4)}, s{S_SO} offen offset:{(i%4)*1024} lds")
    for i in range(16):
        if i % 4 == 0: p(f"s_add_u32 m0, s{S_DST}, {i*1024}")
        p(f"s_add_u32 s{S_SO}, s{S_WO}, {i*4*8192 - (i%4)*1024}")
        p(f"buffer_load_dwordx4 v{V_DW0 + ((i>>1)&1)}, {s(S_WS,4)}, s{S_SO} offen offset:{(i%4)*1024} lds")
    p(f"s_add_u32 s{S_XO}, s{S_XO}, 128")
    p(f"s_add_u32 s{S_WO}, s{S_WO}, {64*8192}")
def loader_batchA(p):
    for i in range(8):
        if i % 4 == 0: p(f"s_add_u32 m0, s{S_DST}, {XA_OFF + i*1024}")
        p(f"s_add_u32 s{S_SO}, s{S_XO}, {i*8192 - (i%4)*1024}")
        p(f"buffer_load_dwordx4 v{V_DX0 + (i%2)}, {s(S_XS,4)}, s{S_SO} offen offset:{(i%4)*1024} lds")
    for t in range(3):
        for i in range(8):
            if i % 4 == 0: p(f"s_add_u32 m0, s{S_DST}, {t*8192 + i*1024}")
            p(f"s_add_u32 s{S_SO}, s{S_WO}, {t*1024 + i*8*3072 - (i%4)*1024}")
            p(f"buffer_load_dwordx4 v{V_DW0 + (i%2)}, {s(S_WS,4)}, s{S_SO} offen offset:{(i%4)*1024} lds")
    p(f"s_add_u32 s{S_XO}, s{S_XO}, 128")
    p(f"s_add_u32 s{S_WO}, s{S_WO}, {64*3072}")
def next_dst(p):
    p(f"s_add_u32 s{S_DST}, s{S_DST}, {SLOT}")
    p(f"s_cmp_eq_u32 s{S_DST}, {3*SLOT}")
    p(f"s_cselect_b32 s{S_DST}, 0, s{S_DST}")

def gen(name="k1_kernel", timing=False, withq=True):
    p = Prog()
    L = V_LANE
    p("s_cmp_ge_u32 s2, 256")
    p("s_cbranch_scc1 END")
    p(f"s_load_dwordx2 s[{S_CKV}:{S_CKV+1}], s[0:1], {KA_BCKV}")
    p(f"s_load_dwordx4 s[{S_WUK}:{S_WUK+3}], s[0:1], {KA_BWUK}") if False else None
    p(f"s_load_dwordx2 s[{S_WUK}:{S_WUK+1}], s[0:1], {KA_BWUK}")
    p(f"s_load_dwordx2 s[{S_WUV}:{S_WUV+1}], s[0:1], {KA_BWUV}")
    p(f"s_load_dwordx2 s[{S_AX}:{S_AX+1}], s[0:1], {KA_AX}")
    p(f"s_load_dwordx2 s[{S_AW}:{S_AW+1}], s[0:1], {KA_AWQKV}")
    p(f"s_load_dwordx2 s[{S_WSP}:{S_WSP+1}], s[0:1], {KA_WS}")
    if withq:
        p(f"s_load_dwordx2 s[{S_BX}:{S_BX+1}], s[0:1], {KA_BX}")
        p(f"s_load_dwordx2 s[{S_WQ}:{S_WQ+1}], s[0:1], {KA_BWQ}")
    if timing:
        p(f"s_load_dwordx2 s[60:61], s[0:1], {KA_OUT}")
        p("s_memtime s[52:53]")
        p("s_memrealtime s[54:55]")
    p(f"v_and_b32 v{L}, 63, v0")
    p(f"v_lshlrev_b32 v{V_LANE16}, 4, v{L}")
    p(f"v_and_b32 v{V_T1}, 0x3ff, v0")
    p(f"v_lshrrev_b32 v{V_T1}, 6, v{V_T1}")
    p(f"s_and_b32 s{S_TMP}, s2, 7")
    p(f"s_lshl_b32 s{S_TMP}, s{S_TMP}, 2")
    p(f"v_readfirstlane_b32 s{S_W}, v{V_T1}", tag='wave')
    p(f"s_bfe_u32 s{S_H}, s2, 0x20003")
    p(f"s_add_u32 s{S_H}, s{S_H}, s{S_TMP}")
    p(f"s_lshr_b32 s{S_T}, s2, 5")
    p(f"v_lshrrev_b32 v{V_T1}, 4, v{L}")
    def stamp():
        if not timing: return []
        return [I("s_memtime s[56:57]"), I("s_waitcnt lgkmcnt(0)"), I("s_sub_u32 s56, s56, s52"), I(f"v_mov_b32 v{V_ONESR}, s56"),
                I(f"buffer_store_dword v{V_ONESR}, v{V_ONESR+1}, s[60:63], s64 offen"), I("s_add_u32 s64, s64, 4")]
    def srd(r, base, size):
        p(f"s_mov_b32 s{r}, s{base}"); p(f"s_mov_b32 s{r+1}, s{base+1}")
        p(f"s_mov_b32 s{r+2}, {size}"); p(f"s_mov_b32 s{r+3}, 0x20000")
    p(f"s_cmp_eq_u32 s{S_W}, 4")
    p("s_cbranch_scc1 LOADER")
    p(f"v_and_b32 v{V_T0}, 15, v{L}")
    p(f"v_lshrrev_b32 v{V_T2}, 1, v{V_T0}")
    p(f"v_xor_b32 v{V_T2}, v{V_T1}, v{V_T2}")
    p(f"v_lshlrev_b32 v{V_T2}, 4, v{V_T2}")
    p(f"v_lshl_add_u32 v{V_T2}, v{V_T0}, 7, v{V_T2}")
    p(f"s_lshl_b32 s{S_TMP}, s{S_W}, 13")
    p(f"v_add_u32 v{V_X0}, s{S_TMP}, v{V_T2}")
    p(f"v_xor_b32 v{V_X1}, 64, v{V_X0}")
    p(f"v_lshrrev_b32 v{V_T2}, 2, v{V_T0}")
    p(f"v_lshl_add_u32 v{V_T3}, v{V_T1}, 3, v{V_T2}")
    p(f"v_lshlrev_b32 v{V_T3}, 8, v{V_T3}")
    p(f"v_and_b32 v{V_TMP}, 3, v{V_T0}")
    p(f"v_lshl_add_u32 v{V_T3}, v{V_TMP}, 3, v{V_T3}")
    p(f"v_and_b32 v{V_TMP}, 1, v{V_T1}")
    p(f"v_lshl_add_u32 v{V_T2}, v{V_TMP}, 2, v{V_T2}")
    for fb in range(8):
        p(f"v_xor_b32 v{V_TMP}, {fb}, v{V_T2}")
        p(f"v_lshl_add_u32 v{V_W+fb}, v{V_TMP}, 5, v{V_T3}")
    p(f"s_mov_b32 s{S_D0}, {SLOT}")
    p(f"s_mov_b32 s{S_D1}, {SLOT}")
    p(f"s_mov_b32 s{S_D2}, {(-2*SLOT) & 0xffffffff}")
    for r in range(0, 128, 2): p(f"v_mov_b64 {v(V_ACC+r,2)}, 0")
    p("s_waitcnt lgkmcnt(0)")
    if timing:
        p("s_mov_b32 s62, 0x400000"); p("s_mov_b32 s63, 0x20000")
        p(f"s_lshl_b32 s64, s2, 3"); p(f"s_add_u32 s64, s64, s{S_W}"); p("s_lshl_b32 s64, s64, 8")
        p(f"v_mov_b32 v{V_ONESR+1}, 0")
    srd(S_OS, S_WSP, WS_END)
    p.add(stamp())
    p("s_barrier")
    p.add(stamp())
    cK = cfgB('K'); cV = cfgB('V')
    p.add(preload(cK))
    p(f"s_mov_b32 s{S_CNT}, 7")
    p(f"s_mov_b32 s{S_PASS}, {0 if withq else 1}")
    p("s_waitcnt lgkmcnt(2)")
    for tag, c in (("K", cK), ("V", cV)):
        p(f"LOOP_{tag}:")
        p.add(chunk_body(c))
        if timing == 2: p.add(stamp())
        p(f"s_sub_u32 s{S_CNT}, s{S_CNT}, 1")
        p(f"s_cbranch_scc0 LOOP_{tag}")
        p.add(stamp())
        if tag == "K" and withq:
            p(f"s_cmp_eq_u32 s{S_PASS}, 0")
            p("s_cbranch_scc0 EPI_K")
            p(f"s_lshl_b32 s{S_OO}, s{S_H}, 19")
            p(f"s_lshl_b32 s{S_TMP}, s{S_T}, 16")
            p(f"s_add_u32 s{S_OO}, s{S_OO}, s{S_TMP}")
            p(f"s_lshl_b32 s{S_TMP}, s{S_W}, 14")
            p(f"s_add_u32 s{S_OO}, s{S_OO}, s{S_TMP}")
            p(f"s_add_u32 s{S_OO}, s{S_OO}, {WS_QB}")
            p(f"s_mov_b32 s{S_TMP2}, {f32hex(CQB)}")
            n = 0
            for tb in range(4):
                for ds in range(4):
                    t = V_TMP + 4 * (n % 4); n += 1
                    a0 = V_ACC + 16 * (2 * ds) + 4 * tb; a1 = V_ACC + 16 * (2 * ds + 1) + 4 * tb
                    if ds == 0: p(f"s_add_u32 s{S_TMP}, s{S_OO}, {tb * 4096}")
                    for r in range(4):
                        p(f"v_mul_f32 v{a0+r}, s{S_TMP2}, v{a0+r}"); p(f"v_mul_f32 v{a1+r}, s{S_TMP2}, v{a1+r}")
                    p(f"v_cvt_pk_bf16_f32 v{t}, v{a0}, v{a0+1}")
                    p(f"v_cvt_pk_bf16_f32 v{t+1}, v{a0+2}, v{a0+3}")
                    p(f"v_cvt_pk_bf16_f32 v{t+2}, v{a1}, v{a1+1}")
                    p(f"v_cvt_pk_bf16_f32 v{t+3}, v{a1+2}, v{a1+3}")
                    p(f"buffer_store_dwordx4 {v(t,4)}, v{V_LANE16}, {s(S_OS,4)}, s{S_TMP} offen offset:{ds*1024}")
                    for z in (a0, a0 + 2, a1, a1 + 2): p(f"v_mov_b64 {v(z,2)}, 0")
            p(f"s_mov_b32 s{S_CNT}, 7")
            p(f"s_mov_b32 s{S_PASS}, 1")
            p("s_nop 1")
            p("s_branch LOOP_K")
            p("EPI_K:")
        if tag == "K":
            p(f"s_lshl_b32 s{S_OO}, s{S_H}, 20")
            p(f"s_lshl_b32 s{S_TMP}, s{S_T}, 17")
            p(f"s_add_u32 s{S_OO}, s{S_OO}, s{S_TMP}")
            p(f"s_lshl_b32 s{S_TMP}, s{S_W}, 15")
            p(f"s_add_u32 s{S_OO}, s{S_OO}, s{S_TMP}")
            n = 0
            for tb in range(4):
                for ds in range(4):
                    t = V_TMP + 4 * (n % 4); n += 1
                    a0 = V_ACC + 16 * (2 * ds) + 4 * tb; a1 = V_ACC + 16 * (2 * ds + 1) + 4 * tb
                    if ds == 0: p(f"s_add_u32 s{S_TMP}, s{S_OO}, {(tb >> 1) * 16384 + (tb & 1) * 4096}")
                    p(f"v_cvt_pk_bf16_f32 v{t}, v{a0}, v{a0+1}")
                    p(f"v_cvt_pk_bf16_f32 v{t+1}, v{a0+2}, v{a0+3}")
                    p(f"v_cvt_pk_bf16_f32 v{t+2}, v{a1}, v{a1+1}")
                    p(f"v_cvt_pk_bf16_f32 v{t+3}, v{a1+2}, v{a1+3}")
                    p(f"buffer_store_dwordx4 {v(t,4)}, v{V_LANE16}, {s(S_OS,4)}, s{S_TMP} offen offset:{ds*1024}")
                    for z in (a0, a0 + 2, a1, a1 + 2): p(f"v_mov_b64 {v(z,2)}, 0")
            p(f"s_mov_b32 s{S_CNT}, 7")
        else:
            n = 0
            for u in range(2):
                for db in range(8):
                    t = V_TMP + 4 * (n % 4); n += 1
                    a0 = V_ACC + 16 * db + 4 * (2 * u); a1 = a0 + 4
                    if db % 4 == 0: p(f"s_add_u32 s{S_TMP}, s{S_OO}, {u * 16384 + 8192 + (db // 4) * 4096}")
                    p(f"v_cvt_pk_bf16_f32 v{t}, v{a0}, v{a0+1}")
                    p(f"v_cvt_pk_bf16_f32 v{t+1}, v{a0+2}, v{a0+3}")
                    p(f"v_cvt_pk_bf16_f32 v{t+2}, v{a1}, v{a1+1}")
                    p(f"v_cvt_pk_bf16_f32 v{t+3}, v{a1+2}, v{a1+3}")
                    p(f"buffer_store_dwordx4 {v(t,4)}, v{V_LANE16}, {s(S_OS,4)}, s{S_TMP} offen offset:{(db%4)*1024}")
                    if db < 3:
                        for z in (a0, a0 + 2, a1, a1 + 2): p(f"v_mov_b64 {v(z,2)}, 0")
    p.add(stamp())
    p(f"v_and_b32 v{V_T0}, 15, v{L}")
    p(f"v_lshrrev_b32 v{V_T2}, 1, v{V_T0}")
    p(f"v_xor_b32 v{V_T2}, v{V_T1}, v{V_T2}")
    p(f"v_lshlrev_b32 v{V_T2}, 4, v{V_T2}")
    p(f"v_lshl_add_u32 v{V_X0}, v{V_T0}, 7, v{V_T2}")
    if not withq: p(f"v_add_u32 v{V_X0}, {SLOT}, v{V_X0}")
    p(f"v_xor_b32 v{V_X1}, 64, v{V_X0}")
    p(f"v_lshrrev_b32 v{V_T2}, 2, v{V_T0}")
    p(f"v_lshl_add_u32 v{V_T3}, v{V_T1}, 3, v{V_T2}")
    p(f"v_lshlrev_b32 v{V_T3}, 7, v{V_T3}")
    p(f"v_and_b32 v{V_TMP}, 3, v{V_T0}")
    p(f"v_lshl_add_u32 v{V_T3}, v{V_TMP}, 3, v{V_T3}")
    p(f"v_lshrrev_b32 v{V_T2}, 3, v{V_T0}")
    p(f"v_and_b32 v{V_TMP}, 1, v{V_T1}")
    p(f"v_lshl_add_u32 v{V_T2}, v{V_TMP}, 1, v{V_T2}")
    p(f"v_xor_b32 v{V_T2}, s{S_W}, v{V_T2}")
    p(f"v_lshl_add_u32 v{V_W}, v{V_T2}, 5, v{V_T3}")
    if not withq: p(f"v_add_u32 v{V_W}, {SLOT}, v{V_W}")
    cA0 = cfgA(0); cA1 = cfgA(1)
    p("s_waitcnt lgkmcnt(0)")
    p.add(preload(cA0))
    p(f"s_mov_b32 s{S_CNT}, 3")
    p("s_waitcnt lgkmcnt(2)")
    p("LOOP_A:")
    bodyA = chunk_body(cA0) + chunk_body(cA1)
    resolve_waits(bodyA)
    p.add(bodyA)
    p(f"s_sub_u32 s{S_CNT}, s{S_CNT}, 1")
    p("s_cbranch_scc0 LOOP_A")
    p.add(stamp())
    p(f"s_lshl_b32 s{S_TMP}, s{S_T}, 2")
    p(f"s_add_u32 s{S_TMP}, s{S_TMP}, s{S_W}")
    p(f"s_lshl_b32 s{S_TMP2}, s{S_TMP}, 6")
    p(f"s_lshl_b32 s{S_OO}, s{S_H}, 1")
    p(f"s_add_u32 s{S_TMP2}, s{S_TMP2}, s{S_OO}")
    p(f"s_lshl_b32 s{S_J}, s{S_TMP2}, 10")
    p(f"s_add_u32 s{S_J}, s{S_J}, {WS_QA}")
    p(f"s_mul_i32 s{S_TG}, s{S_TMP2}, 3072")
    p(f"s_add_u32 s{S_TG}, s{S_TG}, {WS_KVA}")
    p(f"v_and_b32 v{V_T0}, 15, v{L}")
    p(f"v_lshlrev_b32 v{V_T0}, 4, v{V_T0}")
    p(f"v_lshrrev_b32 v{V_T2}, 1, v{V_T1}")
    p(f"v_and_b32 v{V_T3}, 1, v{V_T1}")
    p(f"v_lshl_add_u32 v{V_ST0}, v{V_T2}, 9, v{V_T0}")
    p(f"v_lshl_add_u32 v{V_ST0}, v{V_T3}, 3, v{V_ST0}")
    p(f"v_lshl_add_u32 v{V_ST1}, v{V_T3}, 9, v{V_T0}")
    p(f"v_lshl_add_u32 v{V_ST1}, v{V_T2}, 3, v{V_ST1}")
    p(f"v_mov_b32 v{V_ONESR+2}, 0x3f803f80")
    p(f"v_mov_b32 v{V_ONESR+3}, 0x3f803f80")
    p(f"s_mov_b32 s{S_TMP}, {f32hex(CQA)}")
    for tb in range(4):
        kt = tb >> 1; lo = (tb & 1)
        a0 = V_ACC + 4 * tb; t = V_TMP + 8 * (tb % 2)
        for r in range(4): p(f"v_mul_f32 v{a0+r}, s{S_TMP}, v{a0+r}")
        p(f"v_cvt_pk_bf16_f32 v{t}, v{a0}, v{a0+1}")
        p(f"v_cvt_pk_bf16_f32 v{t+1}, v{a0+2}, v{a0+3}")
        p(f"buffer_store_dwordx2 {v(t,2)}, v{V_ST0}, {s(S_OS,4)}, s{S_J} offen offset:{kt*1024 + lo*256}")
        a0 = V_ACC + 16 + 4 * tb
        p(f"v_cvt_pk_bf16_f32 v{t+2}, v{a0}, v{a0+1}")
        p(f"v_cvt_pk_bf16_f32 v{t+3}, v{a0+2}, v{a0+3}")
        if tb == 2: p(f"s_add_u32 s{S_TG}, s{S_TG}, 3072")
        p(f"buffer_store_dwordx2 {v(t+2,2)}, v{V_ST0}, {s(S_OS,4)}, s{S_TG} offen offset:{lo*256}")
        a0 = V_ACC + 32 + 4 * tb
        p(f"v_cvt_pk_bf16_f32 v{t+4}, v{a0}, v{a0+1}")
        p(f"v_cvt_pk_bf16_f32 v{t+5}, v{a0+2}, v{a0+3}")
        p(f"buffer_store_dwordx2 {v(t+4,2)}, v{V_ST1}, {s(S_OS,4)}, s{S_TG} offen offset:{1024 + lo*1024}")
        p(f"buffer_store_dwordx2 {v(V_ONESR+2,2)}, v{V_ST1}, {s(S_OS,4)}, s{S_TG} offen offset:{1024 + lo*1024 + 256}")
    p.add(stamp())
    p("s_waitcnt vmcnt(0) lgkmcnt(0)")
    p.add(stamp())
    if timing:
        p("s_memrealtime s[58:59]")
        p("s_waitcnt lgkmcnt(0)")
        p("s_sub_u32 s58, s58, s54")
        p(f"v_mov_b32 v{V_ONESR}, s58")
        p(f"buffer_store_dword v{V_ONESR}, v{V_ONESR+1}, s[60:63], s64 offen")
        p("s_waitcnt vmcnt(0)")
    p("s_endpgm")
    p("LOADER:")
    p(f"v_lshrrev_b32 v{V_T0}, 3, v{L}")
    p(f"v_lshlrev_b32 v{V_T2}, 10, v{V_T0}")
    p(f"v_and_b32 v{V_T3}, 7, v{L}")
    p(f"v_xor_b32 v{V_T3}, v{V_T1}, v{V_T3}")
    p(f"v_lshl_add_u32 v{V_DX0}, v{V_T3}, 4, v{V_T2}")
    p(f"v_xor_b32 v{V_DX1}, 64, v{V_DX0}")
    p(f"v_lshlrev_b32 v{V_T2}, 13, v{V_T1}")
    p(f"v_and_b32 v{V_T3}, 15, v{L}")
    p(f"v_lshlrev_b32 v{V_TMP}, 1, v{V_T1}")
    p(f"v_xor_b32 v{V_T3}, v{V_TMP}, v{V_T3}")
    p(f"v_lshl_add_u32 v{V_DW0}, v{V_T3}, 4, v{V_T2}")
    p(f"v_xor_b32 v{V_DW1}, 128, v{V_DW0}")
    p("s_waitcnt lgkmcnt(0)")
    if withq: srd(S_XS, S_BX, 2 * MB); srd(S_WS, S_WQ, 4 * MB)
    else: srd(S_XS, S_CKV, 2 * MB); srd(S_WS, S_WUK, 4 * MB)
    p(f"s_lshl_b32 s{S_XO}, s{S_T}, 18")
    p(f"s_lshl_b32 s{S_WO}, s{S_H}, 8")
    p(f"s_mov_b32 s{S_DST}, 0")
    p(f"s_mov_b32 s{S_CNT}, 0")
    p("LB_PRO:")
    loader_batchB(p); next_dst(p)
    p(f"s_add_u32 s{S_CNT}, s{S_CNT}, 1")
    p(f"s_cmp_eq_u32 s{S_CNT}, 2")
    p("s_cbranch_scc0 LB_PRO2")
    p("s_waitcnt vmcnt(48)")
    p("s_barrier")
    p("LB_PRO2:")
    p(f"s_cmp_lt_u32 s{S_CNT}, 3")
    p("s_cbranch_scc1 LB_PRO")
    p("LB_LOOP:")
    p("s_waitcnt vmcnt(48)")
    p("s_barrier")
    p(f"s_and_b32 s{S_TMP}, s{S_CNT}, 7")
    p("s_cbranch_scc1 LB_NOSW")
    if withq:
        p(f"s_cmp_eq_u32 s{S_CNT}, 8")
        p(f"s_cselect_b32 s{S_WS}, s{S_WUK}, s{S_WUV}")
        p(f"s_cselect_b32 s{S_WS+1}, s{S_WUK+1}, s{S_WUV+1}")
        p(f"s_mov_b32 s{S_XS}, s{S_CKV}")
        p(f"s_mov_b32 s{S_XS+1}, s{S_CKV+1}")
    else:
        p(f"s_mov_b32 s{S_WS}, s{S_WUV}")
        p(f"s_mov_b32 s{S_WS+1}, s{S_WUV+1}")
    p(f"s_lshl_b32 s{S_XO}, s{S_T}, 18")
    p(f"s_lshl_b32 s{S_WO}, s{S_H}, 8")
    p("LB_NOSW:")
    loader_batchB(p); next_dst(p)
    p(f"s_add_u32 s{S_CNT}, s{S_CNT}, 1")
    p(f"s_cmp_lt_u32 s{S_CNT}, {24 if withq else 16}")
    p("s_cbranch_scc1 LB_LOOP")
    p(f"v_lshrrev_b32 v{V_T0}, 3, v{L}")
    p(f"v_mul_u32_u24 v{V_T2}, 3072, v{V_T0}")
    p(f"v_and_b32 v{V_T3}, 1, v{V_T1}")
    p(f"v_lshlrev_b32 v{V_T3}, 1, v{V_T3}")
    p(f"v_and_b32 v{V_TMP}, 7, v{L}")
    p(f"v_xor_b32 v{V_T3}, v{V_T3}, v{V_TMP}")
    p(f"v_lshl_add_u32 v{V_DW0}, v{V_T3}, 4, v{V_T2}")
    p(f"v_xor_b32 v{V_DW1}, 64, v{V_T3}".replace(f"v{V_T3}", f"v{V_DW0}") )
    srd(S_XS, S_AX, 2 * MB); srd(S_WS, S_AW, 1536 * 1024)
    p(f"s_lshl_b32 s{S_XO}, s{S_H}, 16")
    p(f"s_lshl_b32 s{S_WO}, s{S_T}, 7")
    p(f"s_mov_b32 s{S_CNT}, 0")
    p("LA_LOOP:")
    p("s_waitcnt vmcnt(32)")
    p("s_barrier")
    loader_batchA(p); next_dst(p)
    p(f"s_add_u32 s{S_CNT}, s{S_CNT}, 1")
    p(f"s_cmp_lt_u32 s{S_CNT}, 8")
    p("s_cbranch_scc1 LA_LOOP")
    p("s_waitcnt vmcnt(32)")
    p("s_barrier")
    p("s_waitcnt vmcnt(0)")
    p("s_barrier")
    p("s_barrier")
    p("s_endpgm")
    p("END:")
    p("s_endpgm")
    return p

if __name__ == "__main__":
    p = gen()
    for w in range(5):
        tr = trace(p, {'s2': 37}, hints={'wave': lambda st, w=w: st.__setitem__(f's{S_W}', w)})
        pr = check(tr, f"w{w}")
        print(w, len(tr), "mfma", sum(1 for i in tr if i.kind == 'mfma'), "dma", sum(1 for i in tr if i.kind == 'dma'), "bar", sum(1 for i in tr if i.kind == 'barrier'), "problems", len(pr))
        for x in pr[:4]: print("   ", x[:230])
    print(max_regs(p), len(p.ins))
```

```python
from asmlib import *
from layout import *
import struct
def mf(d, a_, b_, c): return I(f"v_mfma_f32_16x16x32_bf16 {d}, {a_}, {b_}, {c}")
D = 4
RINGW = D * 4096
RED = 4 * RINGW
LDS_BYTES = RED + 65536
V_LANE, V_LANE16, V_T0, V_T1, V_T2, V_T3 = 1, 2, 3, 4, 5, 6
V_DW = 8
V_WB = 12
V_WA = 16
V_OUT = 20
V_RD = 21
V_WF = 24
V_ACC = 64
V_CX = 128
V_TMP = 192
S_WS = 4; S_CS = 8; S_OS = 12
S_TT, S_FT, S_W, S_CNT, S_WO, S_CO, S_TMP, S_TMP2, S_CO1, S_M0 = range(16, 26)

def vmem_group(slot, ctx_offs, part):
    dm = [I(f"buffer_load_dwordx4 v{V_DW+i}, {s(S_WS,4)}, s{S_WO} offen offset:{i*1024} lds") for i in range(4)]
    cx = []
    for tb in range(4):
        so, imm = ctx_offs(tb)
        cx.append(I(f"buffer_load_dwordx4 {v(V_CX+16*slot+4*tb,4)}, v{V_LANE16}, {s(S_CS,4)}, s{so} offen offset:{imm}"))
    return dm, cx

def ctxB_offs(ds):
    return lambda tb: ((S_CO if tb < 2 else S_CO1), ((tb & 1) * 4 + ds) * 1024 if ((tb & 1) * 4 + ds) * 1024 < 4096 else None)

def step(sidx, wreg, wsec, issue, vmw):
    out = []
    cur = V_WF + 16 * (sidx % 2); nxt = V_WF + 16 * ((sidx + 1) % 2)
    ns = (sidx + 1) % D
    out.append(I(f"s_waitcnt vmcnt({vmw})"))
    rds = []
    for fb in range(4):
        rds.append(I(f"ds_read_b64_tr_b16 {v(nxt+4*fb,2)}, v{wreg+fb} offset:{ns*4096}"))
        rds.append(I(f"ds_read_b64_tr_b16 {v(nxt+4*fb+2,2)}, v{wreg+fb} offset:{ns*4096 + wsec}"))
    k = 0
    for tb in range(4):
        for fb in range(4):
            d = v(V_ACC + 16 * fb + 4 * tb, 4)
            out.append(mf(d, v(cur + 4 * fb, 4), v(V_CX + 16 * sidx + 4 * tb, 4), d))
            if k < 8: out.append(rds[k])
            k += 1
        out += issue(tb)
    out.append(I("s_waitcnt lgkmcnt(0)"))
    return out

def gen(name="k3_kernel", timing=False, id_base=0, doA=True):
    p = Prog()
    if id_base: p(f"s_sub_u32 s2, s2, {id_base}")
    p("s_cmp_ge_u32 s2, 256")
    p("s_cbranch_scc1 K3_END")
    p(f"s_load_dwordx2 s[34:35], s[0:1], {KA_WS}")
    p(f"s_load_dwordx2 s[36:37], s[0:1], {KA_BWO}")
    p(f"s_load_dwordx2 s[38:39], s[0:1], {KA_AWO}")
    p(f"s_load_dwordx2 s[40:41], s[0:1], {KA_OUT}")
    L = V_LANE
    p(f"v_and_b32 v{L}, 63, v0")
    p(f"v_lshlrev_b32 v{V_LANE16}, 4, v{L}")
    p(f"v_and_b32 v{V_T1}, 0x3ff, v0")
    p(f"v_lshrrev_b32 v{V_T1}, 6, v{V_T1}")
    p(f"s_and_b32 s{S_TMP}, s2, 7")
    p(f"s_lshl_b32 s{S_TMP}, s{S_TMP}, 2")
    p(f"v_readfirstlane_b32 s{S_W}, v{V_T1}", tag='wave')
    p(f"s_bfe_u32 s{S_TT}, s2, 0x20003")
    p(f"s_add_u32 s{S_TT}, s{S_TT}, s{S_TMP}")
    p(f"s_lshr_b32 s{S_FT}, s2, 5")
    p(f"v_lshrrev_b32 v{V_T0}, 3, v{L}")
    p(f"v_lshlrev_b32 v{V_T0}, 10, v{V_T0}")
    p(f"v_lshrrev_b32 v{V_T1}, 4, v{L}")
    p(f"v_lshlrev_b32 v{V_T2}, 1, v{V_T1}")
    p(f"v_and_b32 v{V_T3}, 7, v{L}")
    p(f"v_xor_b32 v{V_T2}, v{V_T2}, v{V_T3}")
    p(f"v_lshl_add_u32 v{V_DW}, v{V_T2}, 4, v{V_T0}")
    for i in range(1, 4): p(f"v_add_u32 v{V_DW+i}, {i*7168}, v{V_DW}")
    p(f"v_and_b32 v{V_T0}, 15, v{L}")
    p(f"v_lshrrev_b32 v{V_T2}, 2, v{V_T0}")
    p(f"s_mul_i32 s{S_M0}, s{S_W}, {RINGW}")
    for (wreg, rowexpr) in ((V_WB, 'B'), (V_WA, 'A')):
        if rowexpr == 'B':
            p(f"v_lshl_add_u32 v{V_T3}, v{V_T1}, 2, v{V_T2}")
        else:
            p(f"v_and_b32 v{V_T3}, 1, v{V_T1}")
            p(f"v_lshl_add_u32 v{V_T3}, v{V_T3}, 2, v{V_T2}")
            p(f"v_lshrrev_b32 v{V_TMP}, 1, v{V_T1}")
            p(f"v_lshl_add_u32 v{V_T3}, v{V_TMP}, 4, v{V_T3}")
        p(f"v_bfe_u32 v{V_TMP}, v{V_T3}, 1, 2")
        p(f"v_lshlrev_b32 v{V_T3}, 7, v{V_T3}")
        p(f"v_and_b32 v{V_TMP+1}, 3, v{V_T0}")
        p(f"v_lshl_add_u32 v{V_T3}, v{V_TMP+1}, 3, v{V_T3}")
        p(f"v_add_u32 v{V_T3}, s{S_M0}, v{V_T3}")
        for fb in range(4):
            p(f"v_xor_b32 v{V_TMP+1}, {fb}, v{V_TMP}")
            p(f"v_lshl_add_u32 v{wreg+fb}, v{V_TMP+1}, 5, v{V_T3}")
    for r in range(0, 64, 2): p(f"v_mov_b64 {v(V_ACC+r,2)}, 0")
    p("s_waitcnt lgkmcnt(0)")
    def srd(r, base, add, size):
        p(f"s_add_u32 s{r}, s{base}, {add}"); p(f"s_addc_u32 s{r+1}, s{base+1}, 0")
        p(f"s_mov_b32 s{r+2}, {size}"); p(f"s_mov_b32 s{r+3}, 0x20000")
    srd(S_WS, 36, 0, 4 * MB); srd(S_CS, 34, WS_CTXB, 16 * MB); srd(S_OS, 40, 0, 4 * MB)
    p(f"s_lshl_b32 s{S_WO}, s{S_W}, 20")
    p(f"s_lshl_b32 s{S_TMP}, s{S_FT}, 7")
    p(f"s_add_u32 s{S_WO}, s{S_WO}, s{S_TMP}")
    p(f"s_lshl_b32 s{S_CO}, s{S_TT}, 19")
    p(f"s_lshl_b32 s{S_TMP}, s{S_W}, 16")
    p(f"s_add_u32 s{S_CO}, s{S_CO}, s{S_TMP}")
    p(f"s_add_u32 s{S_CO1}, s{S_CO}, {32*8192}")
    p(f"v_add_u32 v{V_RD}, 4096, v{V_LANE16}")
    def cx_load(slot, tb, ds):
        so = S_CO if tb < 2 else S_CO1
        vo = V_LANE16 if (tb & 1) == 0 else V_RD
        return I(f"buffer_load_dwordx4 {v(V_CX+16*slot+4*tb,4)}, v{vo}, {s(S_CS,4)}, s{so} offen offset:{ds*1024}")
    def w_dma(i): return I(f"buffer_load_dwordx4 v{V_DW+i}, {s(S_WS,4)}, s{S_WO} offen offset:{i*1024} lds")
    for st in range(D):
        p(f"s_add_u32 m0, s{S_M0}, {st*4096}")
        p("s_nop 0")
        for i in range(4): p.add(w_dma(i))
        for tb in range(4): p.add(cx_load(st, tb, st))
        p(f"s_add_u32 s{S_WO}, s{S_WO}, {32*1024}")
    p(f"s_add_u32 s{S_CO}, s{S_CO}, 8192")
    p(f"s_add_u32 s{S_CO1}, s{S_CO1}, 8192")
    p(f"s_waitcnt vmcnt({8*(D-1)})")
    for fb in range(4):
        p(f"ds_read_b64_tr_b16 {v(V_WF+4*fb,2)}, v{V_WB+fb} offset:0")
        p(f"ds_read_b64_tr_b16 {v(V_WF+4*fb+2,2)}, v{V_WB+fb} offset:2048")
    p("s_waitcnt lgkmcnt(0)")
    p(f"s_mov_b32 s{S_CNT}, 7")
    p("K3_LOOP:")
    for st in range(D):
        def issue(tb, st=st):
            o = []
            if tb == 0: o.append(I(f"s_add_u32 m0, s{S_M0}, {st*4096}"))
            o.append(cx_load(st, tb, st))
            if tb >= 1: o.append(w_dma(tb - 1))
            if tb == 3:
                o.append(w_dma(3))
                o.append(I(f"s_add_u32 s{S_WO}, s{S_WO}, {32*1024}"))
                if st == D - 1:
                    o += [I(f"s_add_u32 s{S_CO}, s{S_CO}, 8192"), I(f"s_add_u32 s{S_CO1}, s{S_CO1}, 8192")]
            return o
        p.add(step(st, V_WB, 2048, issue, 8 * (D - 2)))
    p(f"s_sub_u32 s{S_CNT}, s{S_CNT}, 1")
    p("s_cbranch_scc0 K3_LOOP")
    def reduce_store(col0, tag):
        p("s_nop 7")
        p(f"s_lshl_b32 s{S_TMP}, s{S_W}, 14")
        p(f"s_add_u32 s{S_TMP}, s{S_TMP}, {RED}")
        p(f"v_add_u32 v{V_T0}, s{S_TMP}, v{V_LANE16}")
        for t in range(16): p(f"ds_write_b128 v{V_T0}, {v(V_ACC+4*t,4)} offset:{t*1024}")
        p("s_waitcnt lgkmcnt(0)")
        p("s_barrier")
        p(f"s_lshl_b32 s{S_TMP}, s{S_W}, 10")
        p(f"s_add_u32 s{S_TMP}, s{S_TMP}, {RED}")
        p(f"v_add_u32 v{V_T0}, s{S_TMP}, v{V_LANE16}")
        for fb in range(4):
            for ww in range(4):
                p(f"ds_read_b128 {v(V_ACC+16*fb+4*ww,4)}, v{V_T0} offset:{ww*16384 + fb*4096}")
        p(f"v_and_b32 v{V_T1}, 15, v{V_LANE}")
        p(f"v_lshlrev_b32 v{V_T1}, 11, v{V_T1}")
        p(f"v_lshrrev_b32 v{V_T2}, 4, v{V_LANE}")
        p(f"v_lshl_add_u32 v{V_OUT}, v{V_T2}, 3, v{V_T1}")
        p(f"s_lshl_b32 s{S_TMP}, s{S_TT}, 17")
        p(f"s_lshl_b32 s{S_TMP2}, s{S_W}, 15")
        p(f"s_add_u32 s{S_TMP}, s{S_TMP}, s{S_TMP2}")
        p(f"s_lshl_b32 s{S_TMP2}, s{S_FT}, 7")
        p(f"s_add_u32 s{S_TMP}, s{S_TMP}, s{S_TMP2}")
        if col0: p(f"s_add_u32 s{S_TMP}, s{S_TMP}, {col0*2}")
        for fb in range(4):
            b = V_ACC + 16 * fb
            p(f"s_waitcnt lgkmcnt({12 - 4*fb})")
            for r in range(4):
                p(f"v_add_f32 v{b+r}, v{b+r}, v{b+4+r}")
                p(f"v_add_f32 v{b+8+r}, v{b+8+r}, v{b+12+r}")
            for r in range(4): p(f"v_add_f32 v{b+r}, v{b+r}, v{b+8+r}")
            t = V_TMP + 2 * fb
            p(f"v_cvt_pk_bf16_f32 v{t}, v{b}, v{b+1}")
            p(f"v_cvt_pk_bf16_f32 v{t+1}, v{b+2}, v{b+3}")
            p(f"buffer_store_dwordx2 {v(t,2)}, v{V_OUT}, {s(S_OS,4)}, s{S_TMP} offen offset:{fb*32}")
    if doA:
        p("s_waitcnt vmcnt(0)")
        srd(S_WS, 38, 0, 512 * 1024); srd(S_CS, 34, WS_CTXA, 2 * MB)
        p(f"s_lshl_b32 s{S_WO}, s{S_W}, 17")
        p(f"s_lshl_b32 s{S_TMP}, s{S_FT}, 7")
        p(f"s_add_u32 s{S_WO}, s{S_WO}, s{S_TMP}")
        p(f"s_lshl_b32 s{S_CO}, s{S_TT}, 16")
        p(f"s_lshl_b32 s{S_TMP}, s{S_W}, 12")
        p(f"s_add_u32 s{S_CO}, s{S_CO}, s{S_TMP}")
        for st in range(4):
            p(f"s_add_u32 m0, s{S_M0}, {st*4096}")
            p("s_nop 0")
            for i in range(4): p.add(w_dma(i))
            for tb in range(4):
                p(f"s_add_u32 s{S_CO1}, s{S_CO}, {tb*16384}")
                p(f"buffer_load_dwordx4 {v(V_CX+16*st+4*tb,4)}, v{V_LANE16}, {s(S_CS,4)}, s{S_CO1} offen offset:{st*1024}")
            p(f"s_add_u32 s{S_WO}, s{S_WO}, {32*1024}")
    reduce_store(512, "B")
    if doA:
        p("s_waitcnt lgkmcnt(0)")
        for r in range(0, 64, 2): p(f"v_mov_b64 {v(V_ACC+r,2)}, 0")
        p("s_waitcnt vmcnt(4)")
        for st in range(4):
            wf = V_WF
            for fb in range(4):
                p(f"ds_read_b64_tr_b16 {v(wf+4*fb,2)}, v{V_WA+fb} offset:{st*4096}")
                p(f"ds_read_b64_tr_b16 {v(wf+4*fb+2,2)}, v{V_WA+fb} offset:{st*4096 + 1024}")
            p("s_waitcnt lgkmcnt(0)")
            for tb in range(4):
                for fb in range(4):
                    d = v(V_ACC + 16 * fb + 4 * tb, 4)
                    p.add(mf(d, v(wf + 4 * fb, 4), v(V_CX + 16 * st + 4 * tb, 4), d))
            p("s_nop 1")
        p("s_barrier")
        reduce_store(0, "A")
    p("s_waitcnt vmcnt(0) lgkmcnt(0)")
    p("s_endpgm")
    p("K3_END:")
    p("s_endpgm")
    return p

if __name__ == "__main__":
    p = gen()
    for w in range(4):
        tr = trace(p, {'s2': 37}, hints={'wave': lambda st, w=w: st.__setitem__(f's{S_W}', w)})
        pr = check(tr, f"w{w}")
        print(w, len(tr), "mfma", sum(1 for i in tr if i.kind == 'mfma'), "problems", len(pr))
        for x in pr[:6]: print("   ", x[:230])
    print(max_regs(p), len(p.ins))
```

```python
MB = 1 << 20
WS_KVB = 0
WS_QB  = 32 * MB
WS_CTXB = 48 * MB
WS_QA  = 64 * MB
WS_KVA = 66 * MB
WS_CTXA = 72 * MB
WS_END = 74 * MB
KA_AX, KA_AWQKV, KA_AWO, KA_BX, KA_BCKV, KA_BWQ, KA_BWUK, KA_BWUV, KA_BWO, KA_OUT, KA_DBG, KA_WS = [8*i for i in range(12)]
LOG2E = 1.4426950408889634
BIAS = 90.0
```

```python
import sys
from asmlib import *
import k1, battn16, aattn, k3
HDR = open('concat_heads__mha_block__compressed_kv_cla__prompt.s.ref').read().split('; Override launch geometry')[0]
def rename_labels(txt, prefix):
    import re
    labs = set(re.findall(r'^([A-Za-z_][A-Za-z_0-9]*):', txt, flags=re.M))
    labs = {l for l in labs if not l.endswith('_kernel')}
    for l in sorted(labs, key=len, reverse=True):
        txt = re.sub(r'\b' + l + r'\b', prefix + l, txt)
    return txt
def build(path=None, timing=False):
    ks = []; launches = []
    for name, mod, nthreads, kw in (("k1_kernel", k1, k1.NTHREADS, {}), ("battn_kernel", battn16, 512, {}), ("aattn_kernel", aattn, 256, {}), ("k3_kernel", k3, 256, {})):
        p = mod.gen(**kw)
        txt, kd, info = kernel_text(name, p)
        txt = rename_labels(txt, name[:2] + name[2:4].replace('_', '') + "_")
        ks.append((txt, kd)); launches.append((name, 256, nthreads, mod.LDS_BYTES))
        print(name, info, "instrs", len(p.ins), file=sys.stderr)
    full = build_file(HDR, launches, ks)
    if path: open(path, 'w').write(full)
    return full, launches
if __name__ == "__main__":
    full, _ = build(sys.argv[1] if len(sys.argv) > 1 else 'concat_heads__mha_block__compressed_kv_cla__prompt.s')
    print(len(full), "bytes")
```
